```python
import torch

def _softmax(x, axis=-1):
    return torch.softmax(x, dim=axis)

def _gelu(x):
    return torch.nn.functional.gelu(x, approximate='tanh')

def _silu(x):
    return torch.nn.functional.silu(x)

def _sigmoid(x):
    return torch.sigmoid(x)

def _layernorm(x, axis=-1, eps=1e-05):
    m = x.mean(dim=axis, keepdim=True)
    v = x.var(dim=axis, keepdim=True, unbiased=False)
    return (x - m) / torch.sqrt(v + eps)

def _scatter_add(tgt, idx, src, axis=0):
    return tgt.clone().index_add_(axis, idx, src)

def _segment_sum(src, seg, n):
    out = torch.zeros((n,) + src.shape[1:], dtype=src.dtype)
    return out.index_add_(0, seg, src)

def _pad(x, pw):
    flat = tuple((v for pair in reversed(pw) for v in pair))
    return torch.nn.functional.pad(x, flat)
kernel_name = 'gated_mix__grouped_kv_mqa__memory_aug_recurrent_mem_tr__prompt'

def setup_inputs():

    _w = lambda a: (lambda t: t.to(torch.bfloat16) if t.is_floating_point() else t)(torch.as_tensor(a))

    def _A_setup():
        B, S, D, H = (1, 2048, 1024, 32)
        Dh = D // H
        return {'x': _w((lambda *s: torch.randn(*s, dtype=torch.bfloat16) * 0.1)(B, S, D)), 'wq': _w((lambda *s: torch.randn(*s, dtype=torch.bfloat16) * 0.8)(D, H * Dh)), 'wk': _w((lambda *s: torch.randn(*s, dtype=torch.bfloat16) * 0.2)(D, Dh)), 'wv': _w((lambda *s: torch.randn(*s, dtype=torch.bfloat16) * 0.2)(D, Dh)), 'wo': _w((lambda *s: torch.randn(*s, dtype=torch.bfloat16) * 0.2)(H * Dh, D))}
    _A_in = _A_setup()

    def _B_setup():
        B, S, Dm = (1, 2048, 1024)
        H, Dh = (32, 128)
        M, seg = (8, 32)
        seg = min(seg, S)
        S = S // seg * seg
        return {'x': _w((lambda *s: torch.randn(*s, dtype=torch.bfloat16) * 0.1)(B, S, Dm)), 'mem0': _w((lambda *s: torch.randn(*s, dtype=torch.bfloat16) * 1.6)(B, M, Dm)), 'Wq': _w((lambda *s: torch.randn(*s, dtype=torch.bfloat16) * 0.8)(Dm, H, Dh) * Dm ** (-0.5)), 'Wk': _w((lambda *s: torch.randn(*s, dtype=torch.bfloat16) * 0.8)(Dm, H, Dh) * Dm ** (-0.5)), 'Wv': _w((lambda *s: torch.randn(*s, dtype=torch.bfloat16) * 1.6)(Dm, H, Dh) * Dm ** (-0.5)), 'Wo': _w((lambda *s: torch.randn(*s, dtype=torch.bfloat16) * 1.6)(H, Dh, Dm) * (H * Dh) ** (-0.5)), 'seg_len': seg}
    _B_in = _B_setup()
    return {'A_x': _A_in['x'], 'A_wq': _A_in['wq'], 'A_wk': _A_in['wk'], 'A_wv': _A_in['wv'], 'A_wo': _A_in['wo'], 'B_x': _B_in['x'], 'B_mem0': _B_in['mem0'], 'B_Wq': _B_in['Wq'], 'B_Wk': _B_in['Wk'], 'B_Wv': _B_in['Wv'], 'B_Wo': _B_in['Wo'], 'B_seg_len': _B_in['seg_len'], 'gate_w': _w((lambda *s: torch.randn(*s, dtype=torch.bfloat16) * 1.6)(1024) * 16.0)}

def reference(A_x, A_wq, A_wk, A_wv, A_wo, B_x, B_mem0, B_Wq, B_Wk, B_Wv, B_Wo, B_seg_len, gate_w):

    def _A_ref(x, wq, wk, wv, wo):
        B, S, D = x.shape
        H = 32
        Dh = D // H
        q = (lambda x, *d: x.permute(*d))((x @ wq).reshape(B, S, H, Dh), 0, 2, 1, 3)
        k = x @ wk
        v = x @ wv
        scores = torch.einsum('bhqd,bkd->bhqk', q, k) * Dh ** (-0.5)
        p = _softmax(scores, axis=-1)
        o = torch.einsum('bhqk,bkd->bhqd', p, v)
        return (lambda x, *d: x.permute(*d))(o, 0, 2, 1, 3).reshape(B, S, H * Dh) @ wo

    def _B_ref(x, mem0, Wq, Wk, Wv, Wo, seg_len):
        B, S, Dm = x.shape
        H, Dh = (Wq.shape[1], Wq.shape[2])
        M = mem0.shape[1]
        scale = Dh ** (-0.5)
        n_seg = S // seg_len
        L = M + seg_len
        idx = torch.arange(L)
        mask = (idx[:, None] < M) | (idx[:, None] >= idx[None, :])
        mem = mem0
        outs = []
        for s in range(n_seg):
            xs = x[:, s * seg_len:(s + 1) * seg_len, :].clone()
            h = torch.concatenate([mem, xs], axis=1)
            q = torch.einsum('btd,dhe->bhte', h, Wq)
            k = torch.einsum('btd,dhe->bhte', h, Wk)
            v = torch.einsum('btd,dhe->bhte', h, Wv)
            scores = torch.einsum('bhqe,bhke->bhqk', q, k) * scale
            scores = torch.where(mask[None, None], scores, -1000000000.0)
            p = _softmax(scores, axis=-1)
            o = torch.einsum('bhqk,bhke->bhqe', p, v)
            o = torch.einsum('bhte,hed->btd', o, Wo)
            mem = o[:, :M, :].clone()
            outs.append(o[:, M:, :])
        return torch.concatenate(outs, axis=1)
    x = A_x
    g = _sigmoid((x * gate_w).sum(-1, keepdims=True))
    a = _A_ref(x, A_wq, A_wk, A_wv, A_wo)
    b = _B_ref(x, B_mem0, B_Wq, B_Wk, B_Wv, B_Wo, B_seg_len)
    return g * a + (1 - g) * b
```

```python
import re
TRANS = ('v_exp_f32','v_log_f32','v_rcp_f32','v_rsq_f32','v_sqrt_f32','v_sin_f32','v_cos_f32','v_exp_f16','v_rcp_f16','v_rcp_iflag_f32')
def regs(tok):
    tok = tok.strip()
    if tok.startswith('-'): tok = tok[1:]
    if tok.startswith('|') and tok.endswith('|'): tok = tok[1:-1]
    m = re.fullmatch(r'(abs|neg)\((.*)\)', tok)
    if m: tok = m.group(2)
    m = re.fullmatch(r'([vas])(\d+)', tok)
    if m: return {(m.group(1), int(m.group(2)))}
    m = re.fullmatch(r'([vas])\[(\d+):(\d+)\]', tok)
    if m: return {(m.group(1), i) for i in range(int(m.group(2)), int(m.group(3))+1)}
    if tok in ('vcc','vcc_lo','vcc_hi'): return {('s','vcc')}
    if tok in ('exec','exec_lo','exec_hi'): return {('s','exec')}
    if tok == 'm0': return {('s','m0')}
    return set()
class I:
    def __init__(s, text):
        s.text = text
        t = text.split(';')[0].strip()
        s.label = None; s.op = None
        if not t: return
        if t.endswith(':'): s.label = t[:-1]; return
        if t.startswith('.'): return
        p = t.split(None, 1); s.op = op = p[0]
        rest = p[1] if len(p) > 1 else ''
        rest = re.sub(r':\[([^\]]*)\]', lambda m: ':[' + m.group(1).replace(',', '_') + ']', rest)
        toks = [x.strip() for x in rest.split(',')]
        mods = ''
        if toks:
            q = toks[-1].split(None, 1)
            if q:
                toks[-1] = q[0]; mods = q[1] if len(q) > 1 else ''
        s.mods = mods; s.toks = toks
        R = [regs(x) for x in toks]
        U = lambda L: set().union(*L) if L else set()
        s.mfma = op.startswith('v_mfma') or op.startswith('v_smfmac')
        s.valu = op.startswith('v_') and not s.mfma
        s.vmem = op.startswith(('buffer_','global_','flat_'))
        s.ds = op.startswith('ds_')
        s.salu = op.startswith('s_')
        s.trans = any(op.startswith(x) for x in TRANS)
        s.dot = op.startswith('v_dot')
        s.dpp = ('dpp' in op) or any(k in mods for k in ('row_ror','quad_perm','row_shr','row_shl','row_bcast','row_mirror','row_half_mirror','row_newbcast'))
        s.perml = op.startswith('v_permlane')
        s.w = set(); s.r = set(); s.srcc = set(); s.ab = set(); s.stdata = set()
        s.ldsdma = False
        if s.mfma:
            s.passes = 8 if '32x32' in op else 4
            s.w = R[0]
            if op.startswith('v_smfmac'):
                s.srcc = R[0]; s.ab = R[1] | R[2] | R[3]
            else:
                s.srcc = R[3]; s.ab = R[1] | R[2]
            s.r = s.srcc | s.ab
        elif s.valu:
            if s.perml and 'swap' in op: s.w = R[0] | R[1]; s.r = R[0] | R[1]
            elif op.startswith('v_cmpx'): s.w = {('s','exec')} | R[0]; s.r = U(R[1:])
            elif op.startswith(('v_add_co','v_sub_co','v_addc_co','v_subb_co','v_subrev_co','v_div_scale','v_mad_u64_u32')): s.w = R[0] | R[1]; s.r = U(R[2:])
            elif op == 'v_nop': pass
            else:
                s.w = R[0]; s.r = U(R[1:])
                if op.startswith(('v_fmac','v_dot2c','v_pk_fmac','v_writelane')) or s.dpp or 'op_sel' in mods or 'sdwa' in op: s.r |= R[0]
                if op.startswith('v_cndmask') and len(toks) == 3: s.r |= {('s','vcc')}
        elif s.vmem:
            lds = ('_lds_' in op) or (' lds' in ' ' + mods)
            s.ldsdma = lds
            if lds: s.r = U(R) | {('s','m0')}
            elif '_load' in op:
                s.w = R[0]; s.r = U(R[1:])
                if 'd16' in op: s.r |= R[0]
            elif '_atomic' in op:
                if op.startswith('global') and 'sc0' in mods: s.w = R[0]; s.r = U(R[1:])
                elif op.startswith('buffer') and 'sc0' in mods: s.w = R[0]; s.r = U(R)
                else: s.r = U(R)
            else:
                s.r = U(R)
                if 'x3' in op or 'x4' in op:
                    s.stdata = R[0] if op.startswith('buffer') else R[1]
        elif s.ds:
            if op.startswith(('ds_read','ds_bpermute','ds_permute','ds_swizzle')) or '_rtn' in op: s.w = R[0]; s.r = U(R[1:])
            else: s.r = U(R)
        elif s.salu:
            if op.startswith(('s_cmp','s_cbranch','s_branch','s_waitcnt','s_nop','s_barrier','s_setprio','s_endpgm','s_bitcmp','s_sleep','s_setreg')): s.r = U(R)
            else:
                s.w = R[0]; s.r = U(R[1:])
                if 'saveexec' in op: s.w |= {('s','exec')}
    def states(s):
        if s.op is None: return 0
        if s.op == 's_nop': return int(s.toks[0], 0) + 1
        return 1
def vec(S): return {x for x in S if x[0] in 'va'}
def sca(S): return {x for x in S if x[0] == 's'}
def need(p, c):
    n = 0
    if p.mfma:
        D = p.w
        big = 12 if p.passes == 8 else 8
        if c.mfma:
            if D & c.ab: n = max(n, big)
            if D & c.srcc and not (c.srcc == D and c.passes == p.passes): n = max(n, big - 2)
            if D & c.w and not (D & c.srcc): n = max(n, big)
        elif (c.valu or c.vmem or c.ds) and (D & (c.r | c.w)): n = max(n, big)
        if c.valu and (p.srcc & c.w): n = max(n, 7 if p.passes == 8 else 3)
    if p.valu:
        vw = vec(p.w); sw = sca(p.w)
        if c.mfma and (vw & c.r): n = max(n, 3 if p.dot else 2)
        if c.valu and (c.dpp or c.perml) and (vw & c.r): n = max(n, 2)
        if c.valu and c.op.startswith(('v_readlane','v_readfirstlane')) and (vw & c.r): n = max(n, 1)
        if p.trans and c.valu and not c.trans and (vw & c.r): n = max(n, 1)
        if p.trans and (c.vmem or c.ds) and (vw & c.r): n = max(n, 1)
        if p.dot and (vw & (c.r | c.w)):
            if not (c.op == p.op and not (vw & (regs(c.toks[1]) | regs(c.toks[2])))): n = max(n, 3)
        if ('op_sel' in p.mods or 'sdwa' in p.op or 'dst_sel' in p.mods) and c.valu and (vw & c.r): n = max(n, 1)
        if sw:
            if c.vmem and (sw & c.r): n = max(n, 5)
            if c.valu and (sw & c.r): n = max(n, 4 if c.op.startswith(('v_readlane','v_writelane')) else 2)
            if ('s','exec') in sw:
                if c.mfma or c.perml or (c.valu and c.op.startswith(('v_readlane','v_readfirstlane','v_writelane'))): n = max(n, 4)
                if c.dpp: n = max(n, 5)
    if p.vmem and p.stdata and (p.stdata & c.w): n = max(n, 2)
    if p.salu and ('s','m0') in p.w and (c.ldsdma or (c.op or '').startswith('s_movrel')): n = max(n, 1)
    return n
W = 14
class Asm:
    def __init__(s): s.L = []
    def __call__(s, text):
        for l in text.split('\n'):
            if l.strip(): s.L.append(I(' ' + l.strip() if not l.strip().endswith(':') else l.strip()))
    def pad_fast(s, mfma_time=True):
        L = s.L; total = 0
        while True:
            lab = {x.label: i for i, x in enumerate(L) if x.label}
            preds = {}
            for i, x in enumerate(L):
                if x.op and x.op.startswith(('s_cbranch','s_branch')):
                    preds.setdefault(lab[x.toks[0]], []).append(i)
            extra = {}
            def back(i, dist, nxt, c, seen):
                miss = 0
                while i >= 0 and dist < W:
                    x = L[i]
                    if x.label:
                        for j in preds.get(i, []):
                            if (j, dist, nxt) not in seen:
                                seen.add((j, dist, nxt)); miss = max(miss, back(j, dist, nxt, c, seen))
                        k = i - 1
                        while k >= 0 and L[k].op is None and not L[k].label: k -= 1
                        if k >= 0 and L[k].op in ('s_branch','s_endpgm'): return miss
                    elif x.op:
                        if x.mfma and mfma_time:
                            if nxt is not None: dist = max(dist, nxt + x.passes)
                            nxt = dist
                        miss = max(miss, need(x, c) - dist)
                        dist += x.states() + extra.get(i, 0)
                    i -= 1
                return miss
            for i, c in enumerate(L):
                if c.op and c.op != 's_nop' and (c.valu or c.mfma or c.vmem or c.ds or c.w):
                    m = back(i - 1, 0, None, c, set())
                    if m > 0: extra[i] = m
            if not extra: return total
            N = []
            for i, c in enumerate(L):
                if i in extra: N.append(I(f' s_nop {extra[i]-1}')); total += 1
                N.append(c)
            s.L = L = N
    def text(s): return '\n'.join(x.text for x in s.L) + '\n'
```

```python
from asmlib import *
from chain import KM, VM, KX, VF, QX, FL, f2u
QA=0x6000000; KVA=0x6400000; GT=0x6480000; OP=0x7000000; OPS=320*1024
LDSZ=163840; LCTL=LDSZ-64
FKV=FL; FA=FL+64*128; FAQ=FL+65*128; FO=FL+128*128; FC=FL+192*128
LOG2E=1.4426950408889634
MF='v_mfma_f32_32x32x16_bf16'
GUARD=['']
def R(p,b,n): return f'{p}[{b}:{b+n-1}]'
def interleave(M, O):
    out=[]; n=len(M); k=0
    for i,m in enumerate(M):
        out.append(m)
        e=(len(O)*(i+1))//n
        out+=O[k:e]; k=e
    return out
def srd(A, s, koff, size):
    A(f's_load_dwordx2 s[{s}:{s+1}], s[0:1], {koff}\n s_mov_b32 s{s+2}, {size}\n s_mov_b32 s{s+3}, 0x20000')
def waitflags(A, tag, mask, va='v2', vt='v3', bar=True):
    A(f'''s_cmp_lg_u32 s14, 0
 s_cbranch_scc1 L_wf2{tag}
 s_mov_b64 exec, {mask}
L_wf{tag}:
 buffer_load_dword v1, {va}, s[4:7], 0 offen sc1
 s_waitcnt vmcnt(0)
 v_cmp_lt_u32 vcc, v1, {vt}
 s_cbranch_vccz L_wf1{tag}
 {GUARD[0].replace('LBL','L_wf1'+tag)}
 s_sleep 4
 s_branch L_wf{tag}
L_wf1{tag}:
 s_mov_b64 exec, -1
L_wf2{tag}:''')
    if bar: A('s_barrier')

def gemm(A, tag, MB, NB, WM, WN, NS):
    BM=32*MB*WM; BN=32*NB*WN; XI=BM//64; WROW=BN*2; RPI=1024//WROW; WI=8//RPI
    XS=BM*128; WS=BN*128; WB=NS*XS
    assert WM*WN==8 and NS*(XS+WS)<=LCTL
    lw={256:5,128:4,64:3}[BN]
    A(f'L_gemm{tag}:')
    A(f'''s_mul_i32 s33, s14, {XI*8}
 v_lshrrev_b32 v16, 3, v0
 v_add_u32 v16, s33, v16
 v_and_b32 v17, 7, v0''')
    for i in range(XI):
        A(f'''v_add_u32 v18, {8*i}, v16
 v_bfe_u32 v19, v18, 1, 3
 v_xor_b32 v19, v19, v17
 v_lshlrev_b32 v18, 11, v18
 v_lshl_add_u32 v{1+i}, v19, 4, v18''')
        if i: A(f'v_subrev_u32 v{1+i}, {1024*i}, v{1+i}')
    A(f'''s_lshl_b32 s33, s14, 3
 v_lshrrev_b32 v16, {lw}, v0
 v_add_u32 v16, s33, v16
 v_and_b32 v17, {(1<<lw)-1}, v0''')
    for i in range(WI):
        A(f'v_add_u32 v18, {RPI*i}, v16')
        A('v_and_b32 v19, 3, v18' if BN>=128 else 'v_bfe_u32 v19, v18, 1, 1')
        A(f'''v_lshlrev_b32 v19, 2, v19
 v_xor_b32 v19, v19, v17
 v_mul_u32_u24 v18, s32, v18
 v_lshl_add_u32 v{5+i}, v19, 4, v18''')
        if i: A(f'v_subrev_u32 v{5+i}, {1024*i}, v{5+i}')
    A(f's_lshl_b32 s26, s32, 6\n s_mul_i32 s30, s14, {XI*1024}\n s_mul_i32 s31, s14, {WI*1024}\n s_waitcnt lgkmcnt(0)')
    def dmaL(st):
        b=st%NS; L=[]
        for i in range(XI):
            pre = f's_add_u32 m0, s30, {b*XS}\n' if i==0 else ''
            post = '\n s_add_u32 s24, s24, 128' if i==XI-1 else ''
            L.append(pre+f' buffer_load_dwordx4 v{1+i}, s[8:11], s24 offen offset:{1024*i} lds'+post)
        for i in range(WI):
            pre = f's_add_u32 m0, s31, {WB+b*WS}\n' if i==0 else ''
            post = '\n s_add_u32 s25, s25, s26' if i==WI-1 else ''
            L.append(pre+f' buffer_load_dwordx4 v{5+i}, s[20:23], s25 offen offset:{1024*i} lds'+post)
        return L
    PER=XI+WI
    for st in range(NS-1): A('\n'.join(dmaL(st)))
    lwn={4:2,2:1,8:3,1:0}[WN]
    A(f'''s_lshr_b32 s33, s14, {lwn}        ; wm
 s_and_b32 s34, s14, {WN-1}        ; wn
 v_and_b32 v16, 31, v0
 v_lshrrev_b32 v17, 5, v0
 v_bfe_u32 v18, v0, 1, 3
 v_xor_b32 v18, v18, v17
 s_mul_i32 s35, s33, {MB*4096}
 v_lshl_add_u32 v16, v16, 7, s35''')
    for kk in range(4): A(f'v_xor_b32 v19, {2*kk}, v18\n v_lshl_add_u32 v{9+kk}, v19, 4, v16')
    A(f'''v_bfe_u32 v16, v0, 2, 2          ; r
 v_lshl_add_u32 v17, v17, 3, v16
 v_mul_u32_u24 v17, {WROW}, v17
 v_and_b32 v18, 1, v0
 v_lshl_add_u32 v17, v18, 3, v17
 v_add_u32 v17, {WB}, v17
 v_bfe_u32 v18, v0, 4, 1
 v_bfe_u32 v19, v0, 1, 1
 v_lshl_add_u32 v18, v18, 1, v19
 s_mul_i32 s35, s34, {4*NB}
 v_add_u32 v18, s35, v18''')
    if BN<128: A('v_lshrrev_b32 v16, 1, v16')
    A('v_lshlrev_b32 v16, 2, v16')
    for nb in range(NB):
        A(f'v_add_u32 v19, {4*nb}, v18\n v_xor_b32 v19, v19, v16\n v_lshl_add_u32 v{13+nb}, v19, 4, v17')
    A(f'''v_lshlrev_b32 v15, 4, v0
 s_mul_i32 s35, s33, {MB}
 s_mul_i32 s35, s35, s28
 s_add_u32 s27, s27, s35
 s_mul_i32 s35, s34, {NB*2048}
 s_add_u32 s27, s27, s35''')
    FB=4*(MB+NB)
    xr=lambda p,mb: 16+p*FB+4*mb
    wr=lambda p,nb: 16+p*FB+4*MB+4*nb
    acc=lambda mb,nb: R('a',16*(mb*NB+nb),16)
    def reads(st,kk,p):
        b=st%NS; L=[]
        for nb in range(NB):
            for t in range(2): L.append(f'ds_read_b64_tr_b16 {R("v",wr(p,nb)+2*t,2)}, v{13+nb} offset:{b*WS+(16*kk+4*t)*WROW}')
        X=[f'ds_read_b128 {R("v",xr(p,mb),4)}, v{9+kk} offset:{b*XS+mb*4096}' for mb in range(MB)]
        return L[:2]+X[:1]+L[2:]+X[1:]
    def mfmas(p, first):
        return [f'{MF} {acc(mb,nb)}, {R("v",wr(p,nb),4)}, {R("v",xr(p,mb),4)}, {"0" if first else acc(mb,nb)}' for mb in range(MB) for nb in range(NB)]
    NK=16
    for st in range(NK+1):
        if st<NK:
            inflight=max(0,min(NS-2, NK-1-st))
            A(f's_waitcnt vmcnt({inflight*PER}) lgkmcnt(0)\n s_barrier')
        else: A('s_waitcnt lgkmcnt(0)')
        D=dmaL(st+NS-1) if st+NS-1<NK else []
        for kk in range(4):
            p=kk&1
            Rd=reads(st,kk,p) if st<NK else []
            if st==0 and kk==0: A('\n'.join(Rd+D)); continue
            if kk: A('s_waitcnt lgkmcnt(0)')
            M=mfmas(p^1, st==0 and kk==1)
            O=Rd
            if st>0 and kk<2:
                h=(len(D)+1)//2; dd=D[:h] if kk==0 else D[h:]
                O=interleave(Rd,dd) if Rd else dd
            A('\n'.join(interleave(M,O)))
            if st==NK: break
    for mb in range(MB):
        for nb in range(NB):
            q=(mb*NB+nb)&1; t=64+16*q; o=96+8*q; a=16*(mb*NB+nb)
            for i in range(16): A(f'v_accvgpr_read_b32 v{t+i}, a{a+i}')
            for i in range(8): A(f'v_cvt_pk_bf16_f32 v{o+i}, v{t+2*i}, v{t+2*i+1}')
            for j in range(2): A(f'v_permlane32_swap_b32 v{o+4*j}, v{o+4*j+2}\n v_permlane32_swap_b32 v{o+4*j+1}, v{o+4*j+3}')
            for j in range(2): A(f'buffer_store_dwordx4 {R("v",o+4*j,4)}, v15, s[4:7], s27 offen offset:{nb*2048+j*1024} sc1')
        if mb<MB-1: A('s_add_u32 s27, s27, s28')
    A('s_branch L_next')

def akv(A):
    A('L_akv:')
    srd(A,44,16,65536); srd(A,48,24,65536); srd(A,52,96,2048)
    A(f'''v_lshlrev_b32 v15, 4, v0
 s_lshl_b32 s33, s14, 13
 s_mov_b32 s40, 0x3f803f80
 s_waitcnt lgkmcnt(0)''')
    for m in range(2):
        for hh in range(2):
            A(f's_add_u32 s34, s33, {4096*hh}\n s_add_u32 m0, s34, {65536*m}')
            for i in range(4): A(f'buffer_load_dwordx4 v15, s[{44+4*m}:{47+4*m}], s34 offen offset:{1024*i} lds')
    A('s_mov_b32 m0, 131072')
    for i in range(2): A(f'buffer_load_dwordx4 v15, s[52:55], 0 offen offset:{1024*i} lds')
    A(f'''v_and_b32 v16, 31, v0
 v_lshrrev_b32 v17, 5, v0
 v_lshlrev_b32 v1, 11, v16
 v_lshl_add_u32 v1, v17, 4, v1      ; X voffset
 s_lshl_b32 s34, s12, 3
 s_add_u32 s34, s34, s14            ; rowblk32
 s_lshl_b32 s24, s34, 16
 v_bfe_u32 v18, v0, 2, 2
 v_lshl_add_u32 v18, v17, 3, v18
 v_lshlrev_b32 v2, 6, v18
 v_bfe_u32 v18, v0, 4, 1
 v_lshl_add_u32 v2, v18, 5, v2
 v_and_b32 v18, 3, v0
 v_lshl_add_u32 v2, v18, 3, v2
 v_add_u32 v3, 65536, v2
 v_lshlrev_b32 v4, 4, v17
 v_add_u32 v4, 131072, v4
 v_mov_b32 v5, 0
 v_mov_b32 v6, 0''')
    for i in range(32): A(f'v_accvgpr_write_b32 a{i}, 0')
    for f in range(16): A(f'buffer_load_dwordx4 {R("v",64+4*f,4)}, v1, s[8:11], s24 offen offset:{32*f}')
    A('s_mov_b32 s29, 0\n s_waitcnt vmcnt(16)\n s_barrier\nL_akvl:\n s_add_u32 s24, s24, 512')
    for f in range(16):
        x=64+4*f; w=16+12*(f&1)
        for t in range(2):
            A(f'ds_read_b64_tr_b16 {R("v",w+2*t,2)}, v2 offset:{1024*f+256*t}\n ds_read_b64_tr_b16 {R("v",w+4+2*t,2)}, v3 offset:{1024*f+256*t}')
        A(f'ds_read_b128 {R("v",w+8,4)}, v4 offset:{32*f}\n s_waitcnt vmcnt(15) lgkmcnt(0)')
        A(f'{MF} a[0:15], {R("v",w,4)}, {R("v",x,4)}, a[0:15]\n {MF} a[16:31], {R("v",x,4)}, {R("v",w+4,4)}, a[16:31]')
        for e in range(4):
            A(f'''v_lshlrev_b32 v40, 16, v{x+e}
 v_lshlrev_b32 v41, 16, v{w+8+e}
 v_and_b32 v42, 0xffff0000, v{x+e}
 v_and_b32 v43, 0xffff0000, v{w+8+e}
 v_mul_f32 v40, v40, v41
 v_mul_f32 v42, v42, v43
 v_cvt_pk_bf16_f32 v{44+e}, v40, v42''')
        for e in range(4): A(f'v_dot2c_f32_bf16 v{5+(e&1)}, s40, v{44+e}')
        A(f'buffer_load_dwordx4 {R("v",x,4)}, v1, s[8:11], s24 offen offset:{32*f}')
    A(f'''v_add_u32 v2, 16384, v2
 v_add_u32 v3, 16384, v3
 v_add_u32 v4, 512, v4
 s_add_u32 s29, s29, 1
 s_cmp_lt_u32 s29, 4
 s_cbranch_scc1 L_akvl
 s_waitcnt vmcnt(0)
 s_mov_b32 s35, {f2u(32**-0.5*LOG2E)}
 s_lshl_b32 s27, s34, 12
 s_add_u32 s27, s27, {KVA}''')
    for i in range(32): A(f'v_accvgpr_read_b32 v{64+i}, a{i}')
    for i in range(16): A(f'v_mul_f32 v{64+i}, s35, v{64+i}')
    for i in range(16): A(f'v_cvt_pk_bf16_f32 v{96+i}, v{64+2*i}, v{65+2*i}')
    for j in range(2): A(f'v_permlane32_swap_b32 v{96+4*j}, v{98+4*j}\n v_permlane32_swap_b32 v{97+4*j}, v{99+4*j}')
    for j in range(4): A(f'buffer_store_dwordx4 {R("v",96+4*j,4)}, v15, s[4:7], s27 offen offset:{1024*j} sc1')
    A(f'''v_add_f32 v5, v5, v6
 v_mov_b32 v6, v5
 v_permlane32_swap_b32 v5, v6
 v_add_f32 v5, v5, v6
 v_cvt_pk_bf16_f32 v5, v5, v5
 v_lshlrev_b32 v5, 16, v5
 v_mul_f32 v5, {f2u(-LOG2E)}, v5
 v_exp_f32 v5, v5
 v_add_f32 v5, 1.0, v5
 v_rcp_f32 v5, v5
 v_cvt_pk_bf16_f32 v5, v5, v5
 v_lshlrev_b32 v8, 16, v5
 v_sub_f32 v9, 1.0, v8
 v_cvt_pk_bf16_f32 v9, v9, v9
 v_lshlrev_b32 v9, 16, v9
 v_lshlrev_b32 v7, 3, v0
 s_lshl_b32 s27, s34, 8
 s_add_u32 s27, s27, {GT}
 s_mov_b32 exec_hi, 0
 buffer_store_dwordx2 v[8:9], v7, s[4:7], s27 offen sc1
 s_mov_b64 exec, -1
 s_lshl_b32 s36, s12, 2
 s_add_u32 s36, s36, {FA}
 s_branch L_next''')

def attnA(A):
    S=[16,32]; P=[48,56]; KB=[64,72]; VB=[80,88]; C=[96,112]
    O=[0,16]; Lr=[32,48]; Q=[64,72]
    A(f'''L_attA:
 v_lshlrev_b32 v2, 2, v0
 v_add_u32 v2, {FA}, v2
 s_lshr_b32 s33, s24, 3
 s_lshl_b32 s33, s33, 7
 s_lshl_b32 s34, s25, 3
 s_add_u32 s33, s33, s34
 s_add_u32 s33, s33, {FAQ-FA-32}
 v_add_u32 v4, s33, v2
 v_cmp_lt_u32 vcc, 7, v0
 v_cndmask_b32 v2, v2, v4, vcc
 v_mov_b32 v3, 1''')
    waitflags(A,'A','0x3ff')
    A(f'''v_lshlrev_b32 v15, 4, v0
 s_lshl_b32 s26, s25, 3
 s_add_u32 s26, s26, s14
 s_lshl_b32 s33, s24, 16
 s_lshl_b32 s34, s26, 12
 s_add_u32 s33, s33, s34
 s_add_u32 s33, s33, {QA}
 s_lshl_b32 s30, s14, 12
 s_mov_b32 s38, 0                   ; pass
 v_and_b32 v4, 31, v0
 v_lshlrev_b32 v4, 3, v4
 s_lshl_b32 s34, s24, 8
 s_add_u32 s34, s34, {GT}
 buffer_load_dword v5, v4, s[4:7], s34 offen sc1''')
    for i in range(4): A(f'buffer_load_dwordx4 {R("a",64+4*i,4)}, v15, s[4:7], s33 offen offset:{1024*i} sc1')
    A('v_mov_b32 v6, 0x3f803f80')
    for i in range(4): A(f'v_accvgpr_write_b32 a{80+i}, v6')
    def dma():
        A(f's_and_b32 s33, s31, 0x1ffff\n s_add_u32 m0, s33, s30\n s_add_u32 s33, s31, s30\n s_add_u32 s33, s33, {KVA}\n s_add_u32 s31, s31, 32768')
        for i in range(4): A(f'buffer_load_dwordx4 v15, s[4:7], s33 offen offset:{1024*i} sc1 lds')
    def start():
        A('s_mov_b32 s31, 0')
        for c in range(3): dma()
        A('s_mov_b32 s29, 0\n v_mov_b32 v1, v15')
    def chunk_top(t):
        A(f''' s_cmp_ge_u32 s31, 0x40000
 s_cbranch_scc1 L_ac1{t}
 s_waitcnt vmcnt(4) lgkmcnt(0)
 s_barrier''')
        dma()
        A(f's_branch L_ac2{t}\nL_ac1{t}:\n s_waitcnt vmcnt(0) lgkmcnt(0)\n s_barrier\nL_ac2{t}:')
    qk=lambda y,kb,c: [f'{MF} {R("v",S[y],16)}, {R("v",KB[kb],4)}, {R("a",Q[y],4)}, {c}', f'{MF} {R("v",S[y],16)}, {R("v",KB[kb]+4,4)}, {R("a",Q[y]+4,4)}, {R("v",S[y],16)}']
    pv=lambda y,vb: [f'{MF} {R("a",O[y],16)}, {R("v",VB[vb],4)}, {R("v",P[y],4)}, {R("a",O[y],16)}', f'{MF} {R("a",Lr[y],16)}, a[80:83], {R("v",P[y],4)}, {R("a",Lr[y],16)}',
                     f'{MF} {R("a",O[y],16)}, {R("v",VB[vb]+4,4)}, {R("v",P[y]+4,4)}, {R("a",O[y],16)}', f'{MF} {R("a",Lr[y],16)}, a[80:83], {R("v",P[y]+4,4)}, {R("a",Lr[y],16)}']
    def mx16(y,d,init):
        L=[f'v_max3_f32 v{d}, v{S[y]}, v{S[y]+1}, '+(f'v{S[y]+1}' if init else f'v{d}')]
        L+=[f'v_max3_f32 v{d}, v{S[y]+2*i}, v{S[y]+2*i+1}, v{d}' for i in range(1,8)]
        return L
    def setC():
        for y in range(2):
            A(f'v_mov_b32 v9, v{7+y}\n v_permlane32_swap_b32 v{7+y}, v9\n v_max_f32 v{7+y}, v{7+y}, v9')
            for i in range(16): A(f'v_sub_f32 v{C[y]+i}, 0, v{7+y}')
    A('L_amain:')
    start()
    for i in range(64): A(f'v_accvgpr_write_b32 a{i}, 0')
    for i in range(8): A(f'v_mov_b32 v{P[1]+i}, 0\n v_mov_b32 v{VB[1]+i}, 0')
    A('s_waitcnt vmcnt(8)\n s_barrier')
    A(f'ds_read_b128 v[64:67], v1\n ds_read_b128 v[68:71], v1 offset:1024\n s_waitcnt lgkmcnt(0)\n s_cmp_lg_u32 s38, 0\n s_cbranch_scc1 L_am1')
    a,b=qk(0,0,'0'),qk(1,0,'0')
    A('\n'.join([a[0],b[0],a[1],b[1]]+mx16(0,7,True)+mx16(1,8,True))); setC()
    A('L_am1:'); A('\n'.join(qk(0,0,R('v',C[0],16))))
    A('L_aloop:'); chunk_top('m')
    A('s_mov_b32 s28, 0\nL_ain:')
    def half(x, M, pre):
        s=S[x]; e=lambda i: f'v_exp_f32 v{s+i}, v{s+i}'; c=lambda i: f'v_cvt_pk_bf16_f32 v{P[x]+i}, v{s+2*i}, v{s+2*i+1}'
        G=[[e(0),e(1),e(2)]+pre,[e(3),e(4),e(5),c(0)],[e(6),e(7),e(8),c(1)],[e(9),e(10),c(2),e(11),c(3)],[e(12),e(13),c(4),e(14)],[e(15),c(5),c(6),c(7)]]
        for m,g in zip(M,G): A(m); A('\n'.join(g))
    for u in range(2):
        pre=['v_add_u32 v10, 4096, v1','v_and_b32 v10, 0x1ffff, v10',
             f'ds_read_b128 {R("v",VB[u],4)}, v1 offset:2048', f'ds_read_b128 {R("v",VB[u]+4,4)}, v1 offset:3072',
             f'ds_read_b128 {R("v",KB[u^1],4)}, v10', f'ds_read_b128 {R("v",KB[u^1]+4,4)}, v10 offset:1024', 'v_mov_b32 v1, v10']
        half(0, qk(1,u,R('v',C[1],16))+pv(1,u^1), pre)
        A('s_waitcnt lgkmcnt(0)')
        half(1, qk(0,u^1,R('v',C[0],16))+pv(0,u), [])
    A('''s_add_u32 s28, s28, 1
 s_cmp_lt_u32 s28, 4
 s_cbranch_scc1 L_ain
 s_add_u32 s29, s29, 1
 s_cmp_lt_u32 s29, 8
 s_cbranch_scc1 L_aloop''')
    A('\n'.join(pv(1,1)))
    A(f'''v_accvgpr_read_b32 v7, a{Lr[0]}
 v_accvgpr_read_b32 v8, a{Lr[1]}
 s_cmp_lg_u32 s38, 0
 s_cbranch_scc1 L_afin
 v_add_f32 v10, v7, v8
 v_cmp_nge_f32 vcc, {f2u(2.0**40)}, v10
 v_mov_b32 v11, {LCTL+16}
 v_mov_b32 v12, 1
 s_cmp_lg_u32 s14, 0
 s_cbranch_scc1 L_af0
 v_mov_b32 v13, 0
 ds_write_b32 v11, v13
 s_waitcnt lgkmcnt(0)
L_af0:
 s_barrier
 s_cbranch_vccz L_af1
 ds_write_b32 v11, v12
 s_waitcnt lgkmcnt(0)
L_af1:
 s_barrier
 ds_read_b32 v12, v11
 s_waitcnt lgkmcnt(0)
 v_readfirstlane_b32 s33, v12
 s_cmp_eq_u32 s33, 0
 s_cbranch_scc1 L_afin
''')
    start()
    A('v_mov_b32 v7, 0xff800000\n v_mov_b32 v8, 0xff800000\nL_axl:'); chunk_top('x')
    A('s_mov_b32 s28, 0\nL_axi:\n ds_read_b128 v[64:67], v1\n ds_read_b128 v[68:71], v1 offset:1024\n v_add_u32 v1, 4096, v1\n v_and_b32 v1, 0x1ffff, v1\n s_waitcnt lgkmcnt(0)')
    A('\n'.join([a[0],b[0],a[1],b[1]]+mx16(0,7,False)+mx16(1,8,False)))
    A('''s_add_u32 s28, s28, 1
 s_cmp_lt_u32 s28, 8
 s_cbranch_scc1 L_axi
 s_add_u32 s29, s29, 1
 s_cmp_lt_u32 s29, 8
 s_cbranch_scc1 L_axl''')
    setC()
    A(f'''s_mov_b32 s38, 1
 s_barrier
 s_branch L_amain
L_afin:
 v_rcp_f32 v7, v7
 v_rcp_f32 v8, v8
 s_mul_i32 s27, s24, {OPS}
 s_lshl_b32 s33, s26, 12
 s_add_u32 s27, s27, s33
 s_add_u32 s27, s27, {OP}
 v_mul_f32 v7, v7, v5
 v_mul_f32 v8, v8, v5''')
    for i in range(32): A(f'v_accvgpr_read_b32 v{16+i}, a{i}')
    for i in range(32): A(f'v_mul_f32 v{16+i}, v{16+i}, v{7+i//16}')
    for i in range(16): A(f'v_cvt_pk_bf16_f32 v{48+i}, v{16+2*i}, v{17+2*i}')
    for j in range(4): A(f'buffer_store_dwordx4 {R("v",48+4*j,4)}, v15, s[4:7], s27 offen offset:{1024*j} sc1')
    A(f'''s_lshl_b32 s36, s24, 7
 s_lshl_b32 s33, s25, 2
 s_add_u32 s36, s36, s33
 s_add_u32 s36, s36, {FO}
 s_branch L_next''')

def attnB(A):
    SC=f2u(128**-0.5*LOG2E)
    A(f'''L_attB:
 s_lshr_b32 s33, s24, 2             ; rb
 s_lshl_b32 s34, s12, 3
 s_add_u32 s34, s34, s33
 s_lshl_b32 s34, s34, 7
 s_add_u32 s34, s34, {FKV}
 v_lshlrev_b32 v4, 2, v0
 v_add_u32 v2, s34, v4
 s_lshl_b32 s34, s33, 2
 s_add_u32 s34, s34, {FA}
 v_mov_b32 v5, s34
 v_cmp_eq_u32 vcc, 18, v0
 v_cndmask_b32 v2, v2, v5, vcc
 s_lshl_b32 s34, s12, 7
 s_add_u32 s34, s34, {FC-128}
 v_add_u32 v5, s34, v4
 s_lshl_b32 s34, s24, 1
 s_add_u32 s34, s34, 2
 v_mov_b32 v6, s34
 v_cmp_lt_u32 vcc, 31, v0
 v_cndmask_b32 v2, v2, v5, vcc
 v_mov_b32 v3, 1
 v_cndmask_b32 v3, v3, v6, vcc
 s_cmp_eq_u32 s33, 0
 s_mov_b32 s40, 0x7000f
 s_cselect_b32 s40, 0x7ffff, s40
 s_mov_b32 s41, 0xffff''')
    waitflags(A,'B','s[40:41]')
    A(f'''s_lshr_b32 s33, s14, 2
 s_lshl_b32 s25, s24, 1
 s_add_u32 s25, s25, s33            ; seg
 s_and_b32 s33, s14, 3
 s_lshl_b32 s26, s12, 2
 s_add_u32 s26, s26, s33            ; head
 s_lshl_b32 s27, s25, 18
 s_lshl_b32 s33, s26, 13
 s_add_u32 s27, s27, s33            ; F offset
 v_lshlrev_b32 v15, 4, v0
 s_lshl_b32 s30, s14, 13''')
    for hh in range(2):
        A(f's_add_u32 s33, s27, {KX+4096*hh}\n s_add_u32 s34, s27, {QX+4096*hh}')
        for i in range(4):
            A(f'buffer_load_dwordx4 {R("v",64+16*hh+4*i,4)}, v15, s[4:7], s33 offen offset:{1024*i} sc1')
            A(f'buffer_load_dwordx4 {R("a",16*hh+4*i,4)}, v15, s[4:7], s34 offen offset:{1024*i} sc1')
    A(f'''v_and_b32 v4, 7, v0
 v_lshrrev_b32 v5, 5, v0
 v_lshlrev_b32 v4, 13, v4
 v_lshl_add_u32 v4, v5, 4, v4
 s_lshl_b32 s33, s25, 16
 s_lshl_b32 s34, s26, 8
 s_add_u32 s33, s33, s34
 s_add_u32 s33, s33, {KM}''')
    for i in range(8): A(f'buffer_load_dwordx4 {R("v",96+4*i,4)}, v4, s[4:7], s33 offen offset:{32*i} sc1')
    for hh in range(2):
        A(f's_add_u32 s33, s27, {VF+4096*hh}\n s_add_u32 m0, s30, {4096*hh}')
        for i in range(4): A(f'buffer_load_dwordx4 v15, s[4:7], s33 offen offset:{1024*i} sc1 lds')
    A(f'''v_bfe_u32 v6, v0, 4, 1
 v_lshlrev_b32 v6, 8, v6
 v_lshl_add_u32 v6, v5, 7, v6
 v_bfe_u32 v7, v0, 1, 1
 v_lshl_add_u32 v6, v7, 6, v6
 v_bfe_u32 v7, v0, 2, 2
 v_lshl_add_u32 v6, v7, 2, v6
 v_and_b32 v7, 1, v0
 v_lshl_add_u32 v6, v7, 1, v6
 s_lshl_b32 s33, s25, 16
 s_lshl_b32 s34, s26, 11
 s_add_u32 s33, s33, s34
 s_add_u32 s33, s33, {VM}''')
    for d in range(4):
        for r in range(4): A(f'buffer_load_ushort v{48+4*d+r}, v6, s[4:7], s33 offen offset:{512*d+16*r} sc1')
    A(f'''v_and_b32 v7, 31, v0
 v_lshlrev_b32 v8, 3, v7
 s_lshl_b32 s33, s25, 8
 s_add_u32 s33, s33, {GT}
 buffer_load_dword v9, v8, s[4:7], s33 offen offset:4 sc1
 v_lshlrev_b32 v8, 2, v5
 v_sub_u32 v7, v7, v8               ; q - 4h
 v_bfe_u32 v10, v0, 4, 1
 v_bfe_u32 v11, v0, 1, 1
 v_lshl_add_u32 v10, v10, 1, v11
 v_lshlrev_b32 v10, 9, v10
 v_bfe_u32 v11, v0, 2, 2
 v_add_u32 v11, v11, v8
 v_lshl_add_u32 v10, v11, 4, v10
 v_and_b32 v11, 1, v0
 v_lshl_add_u32 v10, v11, 3, v10
 v_add_u32 v10, s30, v10
 v_mov_b32 v12, 0xff800000
 s_mov_b32 s35, {SC}
 s_waitcnt vmcnt(33)''')
    for i in range(8): A(f'{MF} v[16:31], {R("v",64+4*i,4)}, {R("a",4*i,4)}, {"0" if i==0 else "v[16:31]"}')
    A('s_waitcnt vmcnt(25)')
    for i in range(8): A(f'{MF} v[32:47], {R("v",96+4*i,4)}, {R("a",4*i,4)}, {"0" if i==0 else "v[32:47]"}')
    A('s_waitcnt vmcnt(17)')
    for d in range(4):
        for j in range(2):
            for t in range(2): A(f'ds_read_b64_tr_b16 {R("a",32+8*d+4*j+2*t,2)}, v10 offset:{2048*d+256*j+128*t}')
    for i in range(16):
        A(f'v_cmp_le_i32 vcc, {8*(i>>2)+(i&3)}, v7\n v_cndmask_b32 v{16+i}, v12, v{16+i}, vcc')
    A('v_max3_f32 v13, v16, v17, v18')
    for i in range(19,35,2): A(f'v_max3_f32 v13, v13, v{i}, v{i+1}')
    A('''v_max_f32 v13, v13, v35
 v_mov_b32 v14, v13
 v_permlane32_swap_b32 v13, v14
 v_max_f32 v13, v13, v14
 v_mul_f32 v13, s35, v13''')
    for i in range(16,36): A(f'v_fma_f32 v{i}, v{i}, s35, -v13')
    for i in range(16,36): A(f'v_exp_f32 v{i}, v{i}')
    for i in range(10): A(f'v_cvt_pk_bf16_f32 v{36+i}, v{16+2*i}, v{17+2*i}')
    A('v_mov_b32 v46, 0\n v_mov_b32 v47, 0\n s_waitcnt vmcnt(0) lgkmcnt(0)')
    for d in range(4):
        b=48+4*d
        A(f'v_lshl_or_b32 v{b}, v{b+1}, 16, v{b}\n v_lshl_or_b32 v{b+1}, v{b+3}, 16, v{b+2}\n v_mov_b32 v{b+2}, 0\n v_mov_b32 v{b+3}, 0')
    M=[]
    for j in range(3):
        for d in range(4):
            a=R('a',32+8*d+4*j,4) if j<2 else R('v',48+4*d,4)
            M.append(f'{MF} {R("v",64+16*d,16)}, {a}, {R("v",36+4*j,4)}, {"0" if j==0 else R("v",64+16*d,16)}')
    V=[f'v_add_f32 v{16+i}, v{16+i}, v{26+i}' for i in range(10)]+[f'v_add_f32 v{16+i}, v{16+i}, v{21+i}' for i in range(5)]
    V+=['v_add_f32 v16, v16, v17','v_add_f32 v18, v18, v19','v_add_f32 v16, v16, v20','v_add_f32 v16, v16, v18','v_mov_b32 v17, v16','s_nop 1\n v_permlane32_swap_b32 v16, v17','v_add_f32 v16, v16, v17','v_rcp_f32 v16, v16','s_nop 0\n v_mul_f32 v16, v16, v9']
    A('\n'.join(interleave(M,V)))
    A(f'''s_mul_i32 s27, s25, {OPS}
 s_lshl_b32 s33, s26, 13
 s_add_u32 s27, s27, s33
 s_add_u32 s27, s27, {OP+65536}
 s_add_u32 s33, s27, 4096''')
    for d in range(4):
        for i in range(16): A(f'v_mul_f32 v{64+16*d+i}, v{64+16*d+i}, v16')
        for i in range(8): A(f'v_cvt_pk_bf16_f32 v{20+8*d+i}, v{64+16*d+2*i}, v{65+16*d+2*i}')
        for j in range(2): A(f'buffer_store_dwordx4 {R("v",20+8*d+4*j,4)}, v15, s[4:7], {"s27" if d<2 else "s33"} offen offset:{2048*(d&1)+1024*j} sc1')
    A(f'''s_lshl_b32 s36, s24, 8
 s_lshl_b32 s33, s12, 2
 s_add_u32 s36, s36, s33
 s_add_u32 s36, s36, {FO+8}
 s_mov_b32 s37, 3
 s_branch L_next''')

def oproj(A, tag, MB, D=5):
    NB=2; RN=D+1; NSL=8
    A(f'''L_op{tag}:
 v_lshrrev_b32 v4, 4, v0
 v_and_b32 v5, 15, v0
 v_add_u32 v4, s24, v4
 v_lshlrev_b32 v4, 7, v4
 v_lshl_add_u32 v2, v5, 2, v4
 v_add_u32 v2, {FO}, v2
 v_mov_b32 v3, 1
 s_mov_b32 s40, 0x03ff03ff
 s_mov_b32 s41, {"0x03ff03ff" if MB==4 else "0"}''')
    srd(A,20,32,0x200000); srd(A,48,80,0x800000); srd(A,44,104,0x400000)
    waitflags(A,'O'+tag,'s[40:41]')
    A(f'''v_lshlrev_b32 v15, 4, v0
 v_lshrrev_b32 v4, 3, v0
 v_and_b32 v5, 7, v0
 v_bfe_u32 v6, v0, 4, 1
 v_lshlrev_b32 v6, 2, v6
 v_xor_b32 v5, v5, v6
 v_lshlrev_b32 v1, 11, v4
 v_lshl_add_u32 v1, v5, 4, v1
 v_add_u32 v2, {16384-1024}, v1
 s_lshl_b32 s30, s14, 14
 v_bfe_u32 v4, v0, 2, 2             ; r
 v_lshrrev_b32 v5, 5, v0
 v_lshl_add_u32 v5, v5, 2, v4
 v_lshlrev_b32 v5, 7, v5
 v_and_b32 v6, 1, v0
 v_lshl_add_u32 v5, v6, 3, v5
 v_add_u32 v5, s30, v5
 v_bfe_u32 v6, v0, 4, 1
 v_bfe_u32 v7, v0, 1, 1
 v_lshl_add_u32 v6, v6, 1, v7
 v_lshrrev_b32 v4, 1, v4
 v_lshl_add_u32 v6, v4, 2, v6
 v_lshl_add_u32 v3, v6, 4, v5
 v_xor_b32 v4, 64, v3
 s_mul_i32 s33, s24, {OPS}
 s_add_u32 s33, s33, {OP}
 s_lshl_b32 s34, s14, 13
 s_add_u32 s34, s34, s33            ; o' A part
 s_lshl_b32 s35, s14, 15
 s_add_u32 s35, s35, s33
 s_add_u32 s35, s35, 65536          ; o' B part
 s_lshl_b32 s26, s14, 18
 s_add_u32 s26, s26, s25
 s_lshl_b32 s27, s14, 20
 s_add_u32 s27, s27, s25
 s_waitcnt lgkmcnt(0)''')
    for mb in range(1,MB): A(f'v_add_u32 v{7+mb}, {OPS*mb}, v15')
    ov=lambda mb: 'v15' if mb==0 else f'v{7+mb}'
    xr=lambda s,mb: 32+(s%RN)*4*MB+4*mb
    wr=lambda s,nb: 16+(s&1)*8+4*nb
    assert 32+RN*4*MB<=128
    NT=40; PER=NB+MB
    def loads(s):
        a = s<8
        w,so,xo = ('s[20:23]','s26','s34') if a else ('s[48:51]','s27','s35')
        L=[f's_add_u32 m0, s30, {(s%NSL)*2048}\n buffer_load_dwordx4 v1, {w}, {so} offen lds', f'buffer_load_dwordx4 v2, {w}, {so} offen offset:1024 lds\n s_add_u32 {so}, {so}, 32768']
        q=s&3
        for mb in range(MB):
            L.append(f'buffer_load_dwordx4 {R("v",xr(s,mb),4)}, {ov(mb)}, s[4:7], {xo} offen offset:{1024*q} sc1' + (f'\n s_add_u32 {xo}, {xo}, 4096' if q==3 and mb==MB-1 else ''))
        return L
    def trs(s): return [f'ds_read_b64_tr_b16 {R("v",wr(s,nb)+2*t,2)}, v{3+nb} offset:{(s%NSL)*2048+1024*t}' for nb in range(NB) for t in range(2)]
    for s in range(D): A('\n'.join(loads(s)))
    A(f's_waitcnt vmcnt({PER*(D-1)+MB})'); A('\n'.join(trs(0)))
    for s in range(NT):
        M=[f'{MF} {R("a",16*(mb*NB+nb),16)}, {R("v",wr(s,nb),4)}, {R("v",xr(s,mb),4)}, {"0" if s==0 else R("a",16*(mb*NB+nb),16)}' for mb in range(MB) for nb in range(NB)]
        infl=max(0,min(D-2,NT-2-s))
        A(f's_waitcnt vmcnt({PER*infl+(MB if s+1<NT else 0)}) lgkmcnt(0)')
        O=(trs(s+1) if s+1<NT else [])+(loads(s+D) if s+D<NT else [])
        A('\n'.join(interleave(M,O)))
    PS=16*1056
    A(f'''s_mul_i32 s33, s14, {PS}
 v_add_u32 v1, s33, v15
 v_and_b32 v4, 7, v0
 v_mul_u32_u24 v2, 1056, v4
 v_lshrrev_b32 v5, 3, v0
 s_lshl_b32 s33, s14, 3
 v_add_u32 v5, s33, v5
 v_and_b32 v6, 31, v5
 v_lshl_add_u32 v2, v6, 4, v2
 s_lshr_b32 s33, s14, 2
 s_mul_i32 s33, s33, {8*1056}
 v_add_u32 v2, s33, v2
 v_add_u32 v3, {4*PS}, v2
 v_lshlrev_b32 v5, 11, v5
 v_lshl_add_u32 v5, v4, 4, v5
 s_lshl_b32 s27, s24, 16
 s_add_u32 s27, s27, s25''')
    for rd in range(MB//2):
        A('s_barrier')
        for b in range(4):
            for i in range(4): A(f'ds_write_b128 v1, {R("a",64*rd+16*b+4*i,4)} offset:{(4*b+i)*1056}')
        A('s_waitcnt lgkmcnt(0)\n s_barrier')
        for p in range(8):
            for h in range(2): A(f'ds_read_b128 {R("v",16+8*p+4*h,4)}, v{2+p//4} offset:{(p&3)*PS+512*h}')
        for p in range(1,8):
            A(f's_waitcnt lgkmcnt({14-2*p})')
            for i in range(8): A(f'v_add_f32 v{16+i}, v{16+i}, v{16+8*p+i}')
        for i in range(4): A(f'v_cvt_pk_bf16_f32 v{80+4*rd+i}, v{16+2*i}, v{17+2*i}')
        A(f'buffer_store_dwordx4 {R("v",80+4*rd,4)}, v5, s[44:47], s27 offen\n s_add_u32 s27, s27, {64*2048}')
    A('s_mov_b32 s37, 0\n s_branch L_next')
```

```python
from asmlib import *
XP=0x5000000; MR=0x080000; SP=0x100000; VP=0x180000
KM=0x400000; VM=0x800000; KX=0x1000000; VF=0x2000000; QX=0x3000000
H1=0x200000; H3=0x210000; FL=0x220000; FC=FL+192*128
TS=0x4000000
RGW=3584; RT=14336; LFLAG=24576
SCALE_B = 128**-0.5 * 1.4426950408889634
import struct
def f2u(f): return struct.unpack('<I', struct.pack('<f', f))[0]
def wfrag(f):
    return f'a[{8*f}:{8*f+7}]' if f < 16 else f'v[{64+8*(f-16)}:{64+8*(f-16)+7}]'
def wreg(f, i): return f'a{8*f+i}' if f < 16 else f'v{64+8*(f-16)+i}'

def gen_chain(A, opt):
    dev = opt.get('ts', False)
    full = opt.get('full', False)
    XIT = 'L_cend' if full else 'L_end'
    R = opt.get('R', 1)
    RM = {1:0x11111111,2:0x33333333}.get(R, 0xffffffff)
    H3DELAY = '\n'.join(['ds_read_b32 v8, v5\n s_waitcnt lgkmcnt(0)']*opt.get('h3dl',0))
    guard = opt.get('guard', True)
    ST5 = 's_memtime s[74:75]' if dev else ''
    CNT = {'h':88,'x':89,'r':90,'v':89,'s':90}
    def G(lbl):
        if dev and lbl in CNT: A(f's_add_u32 s{CNT[lbl]}, s{CNT[lbl]}, 1')
        if guard: A(f's_add_u32 s60, s60, 1\n s_cmp_gt_u32 s60, 0x400000\n s_cbranch_scc1 L_end')
    def stamp(k):
        if dev: A(f's_memtime s[{64+2*k}:{65+2*k}]')
    def lgkm(n): A(f's_waitcnt lgkmcnt({0 if dev else n})')
    def flush_ts(n, base):
        if not dev: return
        t = 'g' if base == 22 else 't'
        A(f's_waitcnt lgkmcnt(0)\n s_cmp_eq_u32 s15, 8\n s_cbranch_scc0 L_ts1{t}')
        for k in range(11): A(f's_mov_b32 s{80+k}, 0')
        A(f's_mov_b32 s91, s64\nL_ts1{t}:')
        for k in range(1, n): A(f's_sub_u32 s61, s{64+2*k}, s64\n s_add_u32 s{80+k}, s{80+k}, s61')
        A(f's_cmp_eq_u32 s15, 59\n s_cbranch_scc0 L_ts2{t}\n s_sub_u32 s80, s64, s91')
        A(f's_lshl_b32 s61, s12, 4\n s_add_u32 s61, s61, s13\n s_lshl_b32 s61, s61, 3\n s_add_u32 s61, s61, s14\n s_lshl_b32 s61, s61, 6\n s_add_u32 s61, s61, {TS}')
        A('s_mov_b64 exec, 1')
        for k in range(11):
            A(f'v_mov_b32 v{base}, s{80+k}\n buffer_store_dword v{base}, off, s[4:7], s61 offset:{4*k}')
        A(f's_mov_b64 exec, -1\nL_ts2{t}:')
    A(f'''
L_chain:
 s_mov_b32 s88, 0
 s_mov_b32 s89, 0
 s_mov_b32 s90, 0
 s_mov_b32 s60, 0
 s_mov_b32 s15, 0
 s_lshr_b32 s18, s13, 2          ; hl
 s_and_b32 s19, s13, 3           ; ds
 s_lshl_b32 s20, s12, 14         ; x*16K
 v_and_b32 v56, 15, v0           ; n
 v_lshrrev_b32 v57, 4, v0        ; g
 v_mov_b32 v3, 0x4444
 v_mov_b32 v58, 0xeeee
 v_cmp_lt_u32 vcc, 7, v56
 v_cndmask_b32 v3, v3, v58, vcc
 v_bfe_u32 v59, v0, 2, 3
 v_mul_u32_u24 v6, 320, v59
 v_and_b32 v59, 3, v0
 v_lshl_add_u32 v6, v59, 4, v6
 v_lshrrev_b32 v59, 5, v0
 v_lshl_add_u32 v6, v59, 3, v6
 s_and_b32 s21, s14, 3
 s_lshl_b32 s22, s21, 6
 s_add_u32 s22, s22, {RT}
 v_add_u32 v6, s22, v6
 s_mov_b32 s40, 0x3f80
 s_mov_b32 s41, 0x3f800000
 s_mov_b32 s42, 0x05040100
 s_mov_b32 s43, 0x07060302
 s_mov_b32 s44, -2
 v_mov_b32 v60, -1
 v_mov_b32 v61, -1
 v_mov_b32 v62, -1
 s_cmp_ge_u32 s14, 4
 s_cbranch_scc1 L_T
''')
    def copies(t):
        A(f'''s_cmp_gt_u32 s14, 1
 s_cbranch_scc1 L_Gcp2{t}
 s_mov_b32 exec_lo, s58
 s_mov_b32 exec_hi, s58
 buffer_store_dwordx4 v[40:43], v57, s[4:7], s57 offen sc1
 s_mov_b64 exec, -1
L_Gcp2{t}:''')
    A(f'''
 s_load_dwordx2 s[8:9], s[0:1], 56
 s_load_dwordx2 s[24:25], s[0:1], 64
 s_load_dwordx2 s[28:29], s[0:1], 72
 s_load_dwordx2 s[32:33], s[0:1], 48
 s_mov_b32 s10, 0x800000
 s_mov_b32 s11, 0x20000
 s_mov_b32 s26, 0x800000
 s_mov_b32 s27, 0x20000
 s_mov_b32 s30, 0x800000
 s_mov_b32 s31, 0x20000
 s_mov_b32 s34, 0x4000
 s_mov_b32 s35, 0x20000
 s_lshl_b32 s23, s12, 4
 s_add_u32 s23, s23, s13
 s_lshl_b32 s23, s23, 6          ; s23 = colbyte
 v_lshlrev_b32 v59, 2, v0
 s_lshl_b32 s36, s13, 10
 s_lshl_b32 s37, s14, 8
 s_add_u32 s36, s36, s37
 s_add_u32 s36, s36, {XP}
 s_and_b32 s38, s12, {R-1}
 s_lshl_b32 s38, s38, 17
 s_add_u32 s36, s36, s38
 v_add_u32 v1, s36, v59
 s_lshl_b32 s36, s13, 10
 s_add_u32 s36, s36, s37
 s_add_u32 s36, s36, s20
 s_add_u32 s36, s36, {MR}
 v_add_u32 v2, s36, v59
 s_lshl_b32 s36, s14, 12
 s_add_u32 s36, s36, s20
 s_add_u32 s36, s36, {MR}
 v_lshlrev_b32 v7, 4, v0
 v_add_u32 v7, s36, v7
 v_and_b32 v59, 1, v57
 v_mul_u32_u24 v4, 1664, v59
 v_lshl_add_u32 v4, v56, 3, v4
 s_mul_i32 s36, s14, {RGW}
 v_add_u32 v4, s36, v4
 v_lshrrev_b32 v59, 1, v57
 v_lshl_add_u32 v5, v59, 2, v4
 v_add_u32 v5, 288, v5
 v_mul_u32_u24 v59, 144, v59
 v_add_u32 v4, v4, v59
''')
    for sl in range(4):
        A(f's_mov_b32 s36, {sl<<17}\n buffer_store_dword v60, v2, s[4:7], s36 offen')
    A(f'''
 v_mov_b32 v8, v56
 v_mov_b32 v9, v57
 v_lshlrev_b32 v10, 16, v9
 v_lshl_add_u32 v10, v8, 2, v10
 v_add_u32 v10, s23, v10
 v_bfe_u32 v12, v0, 2, 3
 v_lshlrev_b32 v11, 11, v12
 v_and_b32 v12, 3, v0
 v_lshl_add_u32 v11, v12, 3, v11
 v_lshrrev_b32 v12, 5, v0
 v_lshl_add_u32 v11, v12, 2, v11
 s_lshl_b32 s36, s13, 7
 s_lshl_b32 s37, s14, 5
 s_add_u32 s36, s36, s37
 v_add_u32 v11, s36, v11
 s_mov_b32 s58, 0x55555555
 s_cmp_eq_u32 s14, 0
 s_cselect_b32 s58, 0xff00ff00, s58
 s_lshl_b32 s36, s12, 11
 s_lshl_b32 s37, s13, 2
 s_add_u32 s36, s36, s37
 s_add_u32 s36, s36, {H3}
 v_lshlrev_b32 v59, 7, v0
 v_add_u32 v59, s36, v59
 s_cmp_eq_u32 s14, 0
 s_cbranch_scc1 L_G0i
 s_cmp_eq_u32 s14, 1
 s_cbranch_scc0 L_Gw
 v_bfe_u32 v12, v0, 1, 2         ; rho&3
 v_bfe_u32 v13, v0, 4, 1         ; rho>>3
 v_lshl_add_u32 v12, v13, 2, v12 ; key
 v_mul_u32_u24 v63, 416, v12
 v_lshrrev_b32 v12, 5, v0        ; g'
 v_lshl_add_u32 v63, v12, 6, v63
 v_and_b32 v12, 1, v0
 v_lshl_add_u32 v63, v12, 5, v63
 v_bfe_u32 v12, v0, 3, 1         ; half
 v_lshl_add_u32 v63, v12, 3, v63
 v_add_u32 v63, 288, v63
 v_add_u32 v58, 16, v63
 v_lshlrev_b32 v12, 3, v0
 s_lshl_b32 s36, s13, 9
 s_add_u32 s36, s36, s20
 s_add_u32 s36, s36, {VP}
 v_add_u32 v56, s36, v12
 s_lshl_b32 s36, s23, 3
 s_add_u32 s36, s36, {VM}
 v_add_u32 v57, s36, v12
''')
    for sl in range(4):
        A(f's_mov_b32 s36, {sl<<17}\n buffer_store_dwordx2 v[60:61], v56, s[4:7], s36 offen')
    A(f'''
 s_branch L_Gw
L_G0i:
 v_and_b32 v12, 7, v8
 v_mul_u32_u24 v63, 416, v12
 v_lshrrev_b32 v13, 3, v8
 v_mul_u32_u24 v14, 144, v13
 v_add_u32 v63, v63, v14
 v_lshl_add_u32 v63, v9, 5, v63
 v_mul_u32_u24 v56, 12, v0
 s_lshl_b32 s36, s13, 10
 s_add_u32 s36, s36, s20
 s_add_u32 s36, s36, {SP}
 v_add_u32 v56, s36, v56
 v_lshlrev_b32 v14, 4, v9
 v_add_u32 v14, s23, v14         ; colbyte + 16g
 v_lshl_add_u32 v57, v12, 13, v14
 v_add_u32 v57, {KM}, v57        ; k_m store
 ; key(b=0,r) = 16*(r>>3) + 8*((r>>2)&1) + (r&3) ; b=1: +4
 v_lshlrev_b32 v15, 4, v13
 v_bfe_u32 v12, v8, 2, 1
 v_lshl_add_u32 v15, v12, 3, v15
 v_and_b32 v12, 3, v8
 v_add_u32 v15, v15, v12
 v_lshlrev_b32 v14, 9, v9
 v_lshl_add_u32 v58, v15, 4, v14
 s_lshl_b32 s36, s23, 5
 s_add_u32 s36, s36, {KX}
 v_add_u32 v58, s36, v58
 v_add_u32 v59, 64, v58
''')
    for sl in range(4):
        A(f's_mov_b32 s36, {sl<<17}\n buffer_store_dwordx3 v[60:62], v56, s[4:7], s36 offen')
    A(f'''
L_Gw:
 s_waitcnt vmcnt(0) lgkmcnt(0)
 s_barrier
 s_lshl_b32 s36, s14, 21         ; 256*w rows * 8192
''')
    srd = ['s[8:11]','s[24:27]','s[28:31]']
    blk_of = lambda t, b: [[0,2],[1,3],[4,5]][t][b]
    groups = [(j,t) for j in range(4) for t in range(3)]
    def issue(j,t):
        for H in range(2):
            for e in range(8):
                f = j*6 + blk_of(t, e&1)
                A(f's_add_u32 s37, s36, {(64*j+32*H+e)*8192}\n buffer_load_dword {wreg(f, H*4+e//2)}, v10, {srd[t]}, s37 offen')
    def fix(j,t):
        f0 = j*6+blk_of(t,0); f1 = j*6+blk_of(t,1)
        for p in range(8):
            a, b = wreg(f0,p), wreg(f1,p)
            ra, rb = a, b
            if a[0]=='a': A(f'v_accvgpr_read_b32 v12, {a}'); ra='v12'
            if b[0]=='a': A(f'v_accvgpr_read_b32 v13, {b}'); rb='v13'
            A(f'v_perm_b32 v14, {rb}, {ra}, s42\n v_perm_b32 v15, {rb}, {ra}, s43')
            A(f'v_accvgpr_write_b32 {a}, v14' if a[0]=='a' else f'v_mov_b32 {a}, v14')
            A(f'v_accvgpr_write_b32 {b}, v15' if b[0]=='a' else f'v_mov_b32 {b}, v15')
    A('buffer_load_dword v16, v11, s[32:35], 0 offen')
    for gi in range(3): issue(*groups[gi])
    for gi in range(12):
        rem = min(3, 12-gi) - 1
        A(f's_waitcnt vmcnt({16*rem})')
        if gi+3 < 12: issue(*groups[gi+3])
        fix(*groups[gi])
    for r in range(24,48): A(f'v_mov_b32 v{r}, 0')
    A(f'''
 v_min_u32 v16, s44, v16
 s_mov_b32 s45, 0
 s_lshl_b32 s36, s14, 2
 s_add_u32 s36, s36, {LFLAG}
 v_mov_b32 v61, s36
 v_mov_b32 v62, 1
 s_waitcnt vmcnt(0)
 s_barrier
 s_setprio 2
 s_cmp_lg_u32 s14, 0
 s_cbranch_scc1 L_Gpub
 buffer_load_dwordx4 v[48:51], v58, s[4:7], 0 offen sc1
 buffer_load_dwordx4 v[52:55], v59, s[4:7], 0 offen sc1
 s_branch L_Gpub
L_Gloop:
''')
    stamp(0)
    A('''
 ds_read2st64_b64 v[8:11], v6 offset0:0 offset1:5
 ds_read2st64_b64 v[12:15], v6 offset0:10 offset1:15
''')
    if opt.get('own_first', True):
        A('''s_waitcnt lgkmcnt(0)
 v_add_f32 v8, v8, v10
 v_add_f32 v9, v9, v11
 v_add_f32 v12, v12, v14
 v_add_f32 v13, v13, v15
 v_add_f32 v8, v8, v12
 v_add_f32 v9, v9, v13''')
    if opt.get('defer', True): copies('d')
    if opt.get('late',1) >= 1:
        for r in range(24,48): A(f'v_mov_b32 v{r}, 0')
    for k in range(opt.get('gdl',0)): A('ds_read_b32 v14, v6\n s_waitcnt lgkmcnt(0)')
    stamp(6)
    A('L_Gx:')
    for i in range(1,8): A(f'buffer_load_dword v{16+i}, v1, s[4:7], s{46+i} offen sc1')
    G('x')
    A('v_mov_b32 v10, v8\n v_mov_b32 v11, v9')
    for i in range(1,8):
        A(f's_waitcnt vmcnt({7-i})\n v_dot2c_f32_bf16 v10, s40, v{16+i}\n v_dot2c_f32_bf16 v11, s41, v{16+i}')
        if i == 3: A('v_max3_u32 v12, v17, v18, v19')
        if i == 5: A('v_max3_u32 v12, v12, v20, v21')
    A('''v_max3_u32 v12, v12, v22, v23
 v_cmp_eq_u32 vcc, -1, v12
 v_cvt_pk_bf16_f32 v16, v10, v11
 v_min_u32 v16, s44, v16
 s_cbranch_vccnz L_Gx
L_Gpub:
 buffer_store_dword v16, v2, s[4:7], s45 offen''')
    stamp(1)
    if opt.get('w2', False): A('s_waitcnt vmcnt(0)')
    acc = lambda b: f'v[{24+4*b}:{27+4*b}]'
    gl = lambda j: f'buffer_load_dwordx4 v[{8+4*j}:{11+4*j}], v7, s[4:7], s45 offen offset:{1024*j} sc1'
    smf = lambda j, b: f'v_smfmac_f32_16x16x64_bf16 {acc(b)}, v[{8+4*j}:{11+4*j}], {wfrag(6*j+b)}, v3'
    chk = lambda j: [f'v_max3_u32 v60, v{8+4*j}, v{9+4*j}, v{10+4*j}', f'v_max_u32 v60, v60, v{11+4*j}', 'v_cmp_eq_u32 vcc, -1, v60']
    for j in range(4): A(gl(j))
    A('s_waitcnt vmcnt(3)'); stamp(2); A('\n'.join(chk(0))); A('s_cbranch_vccnz L_Gr0')
    for j in range(3):
        c = chk(j+1)
        A(smf(j,0)); A(smf(j,1)); A(smf(j,2)); A(f's_waitcnt vmcnt({2-j})'); A(c[0]); A(smf(j,3)); A(c[1]); A(c[2]); A(smf(j,4)); A(smf(j,5)); A(f's_cbranch_vccnz L_Gr{j+1}')
    A('ds_write_b32 v61, v62')
    for b in range(5): A(smf(3,b))
    for i in range(4): A(f'v_permlane32_swap_b32 v{24+i}, v{28+i}')
    A(smf(3,5))
    A('L_Gfold:')
    for i in (0,2,1,3): A(f'v_add_f32 v{24+2*i}, v{24+i}, v{28+i}')
    for i in range(4): A(f'v_permlane32_swap_b32 v{32+i}, v{36+i}')
    for i in range(4): A(f'v_add_f32 v{25+2*i}, v{32+i}, v{36+i}')
    A('ds_write2_b64 v4, v[24:25], v[26:27] offset0:0 offset1:52\n ds_write2_b64 v4, v[28:29], v[30:31] offset0:104 offset1:156')
    for i in range(4): A(f'v_permlane32_swap_b32 v{40+i}, v{44+i}')
    for i in range(4): A(f'v_add_f32 v{40+i}, v{40+i}, v{44+i}\n ds_write_b32 v5, v{40+i} offset:{416*i}')
    stamp(3)
    A('''s_waitcnt vmcnt(0) lgkmcnt(0)
 s_barrier                       ; barrier G''')
    stamp(4)
    A('''s_cmp_eq_u32 s14, 1
 s_cbranch_scc1 L_Gv
 s_cmp_lg_u32 s14, 0
 s_cbranch_scc1 L_G23''')
    for w in range(4):
        A(f'ds_read_b128 v[{8+8*w}:{11+8*w}], v63 offset:{RGW*w}\n ds_read_b128 v[{12+8*w}:{15+8*w}], v63 offset:{RGW*w+16}')
    A('''s_mov_b32 vcc_lo, -1
 s_mov_b32 vcc_hi, 0
 v_mov_b32 v61, 0xf149f2ca
 v_cndmask_b32 v44, 0, v61, vcc
 v_mov_b32 v45, v44
 v_mov_b32 v46, v44
 v_mov_b32 v47, v44''')
    lgkm(4)
    for i in range(8): A(f'v_add_f32 v{8+i}, v{8+i}, v{16+i}')
    lgkm(2)
    for i in range(8): A(f'v_add_f32 v{8+i}, v{8+i}, v{24+i}')
    lgkm(0)
    for i in range(4): A(f'v_add_f32 v{8+2*i}, v{8+2*i}, v{32+2*i}\n v_add_f32 v{9+2*i}, v{9+2*i}, v{33+2*i}\n v_cvt_pk_bf16_f32 v{40+i}, v{8+2*i}, v{9+2*i}')
    A('''v_mfma_f32_16x16x32_bf16 v[8:11], v[48:51], v[40:43], 0
 v_mfma_f32_16x16x32_bf16 v[12:15], v[52:55], v[40:43], 0
 v_mfma_f32_16x16x32_bf16 v[44:47], v[40:43], v[40:43], v[44:47]
 v_cvt_pk_bf16_f32 v16, v8, v9
 v_cvt_pk_bf16_f32 v20, v10, v11
 v_cvt_pk_bf16_f32 v17, v12, v13
 v_cvt_pk_bf16_f32 v21, v14, v15
 v_mov_b32_dpp v16, v20 row_ror:8 row_mask:0xf bank_mask:0xc
 v_cvt_pk_bf16_f32 v18, v44, v45
 v_cvt_pk_bf16_f32 v22, v46, v47
 v_mov_b32_dpp v17, v21 row_ror:8 row_mask:0xf bank_mask:0xc
 v_min_u32 v16, s44, v16
 v_mov_b32_dpp v18, v22 row_ror:8 row_mask:0xf bank_mask:0xc
 v_min_u32 v17, s44, v17
 v_min_u32 v18, s44, v18
 buffer_store_dwordx3 v[16:18], v56, s[4:7], s45 offen''')
    stamp(5)
    A(f'''s_setprio 0
 s_xor_b32 s37, s45, {2<<17}
 v_mov_b32 v20, -1
 v_mov_b32 v21, -1
 v_mov_b32 v22, -1
 buffer_store_dwordx3 v[20:22], v56, s[4:7], s37 offen
 s_add_u32 s36, s15, 1
 s_min_u32 s36, s36, 63
 s_lshl_b32 s36, s36, 18
 s_mov_b32 s62, s36
 s_branch L_Gtail
L_Gv:
 ds_read2st64_b64 v[8:11], v63 offset0:0 offset1:7
 ds_read2st64_b64 v[12:15], v58 offset0:0 offset1:7
 ds_read2st64_b64 v[16:19], v63 offset0:14 offset1:21
 ds_read2st64_b64 v[20:23], v58 offset0:14 offset1:21''')
    lgkm(2)
    A('''v_add_f32 v8, v8, v10
 v_add_f32 v9, v9, v11
 v_add_f32 v12, v12, v14
 v_add_f32 v13, v13, v15''')
    lgkm(0)
    A(f'''v_add_f32 v16, v16, v18
 v_add_f32 v17, v17, v19
 v_add_f32 v20, v20, v22
 v_add_f32 v21, v21, v23
 v_add_f32 v8, v8, v16
 v_add_f32 v9, v9, v17
 v_add_f32 v12, v12, v20
 v_add_f32 v13, v13, v21
 v_cvt_pk_bf16_f32 v16, v8, v9
 v_cvt_pk_bf16_f32 v17, v12, v13
 v_min_u32 v16, s44, v16
 v_min_u32 v17, s44, v17
 buffer_store_dwordx2 v[16:17], v56, s[4:7], s45 offen
 {ST5}
 s_setprio 0
 v_mov_b32 v40, v16
 v_mov_b32 v41, v17
 v_mov_b32_dpp v42, v16 quad_perm:[1,1,3,3] row_mask:0xf bank_mask:0xf
 v_mov_b32_dpp v43, v17 quad_perm:[1,1,3,3] row_mask:0xf bank_mask:0xf
 s_xor_b32 s37, s45, {2<<17}
 v_mov_b32 v20, -1
 v_mov_b32 v21, -1
 buffer_store_dwordx2 v[20:21], v56, s[4:7], s37 offen
 s_branch L_Gtail
L_G23:
 {ST5}
 s_cmp_lg_u32 s14, 2
 s_cbranch_scc1 {'L_G3' if full else 'L_Gtail'}
 {H3DELAY}
 s_mov_b64 exec, 0xffff
 buffer_store_dword v62, v59, s[4:7], 0 offen
 s_mov_b64 exec, -1
L_Gtail:
 s_setprio 0
 s_xor_b32 s37, s45, {2<<17}
 v_mov_b32 v23, -1
 buffer_store_dword v23, v2, s[4:7], s37 offen''')
    flush_ts(7, 22)
    A('s_lshl_b32 s57, s15, 16')
    if not opt.get('defer', True): copies('a')
    A(f'''s_cmp_eq_u32 s15, 63
 s_cbranch_scc1 L_Gend
 s_add_u32 s15, s15, 1
 s_and_b32 s45, s15, 3
 s_lshl_b32 s45, s45, 17
 s_lshl_b32 s46, s12, 14
 s_lshl_b32 s47, s45, 3
 s_add_u32 s46, s46, s47''')
    for i in range(1,8): A(f's_xor_b32 s{46+i}, s46, {i<<14}')
    A('s_mul_i32 s54, s15, 0x01010101\n s_mov_b32 s55, s54')
    if opt.get('late',1) < 1:
        for r in range(24,48): A(f'v_mov_b32 v{r}, 0')
    A(f'''s_lshl_b32 s36, s14, 2
 s_add_u32 s36, s36, {LFLAG}
 v_mov_b32 v61, s36
 s_add_u32 s36, s15, 1
 v_mov_b32 v62, s36
 s_waitcnt vmcnt(0)
 s_barrier                       ; barrier T
 s_setprio 2
 s_cmp_lg_u32 s14, 0
 s_cbranch_scc1 L_Gloop
 buffer_load_dwordx4 v[48:51], v58, s[4:7], s62 offen {opt.get("vxf","sc1")}
 buffer_load_dwordx4 v[52:55], v59, s[4:7], s62 offen {opt.get("vxf","sc1")}
 s_branch L_Gloop
L_G3:
 s_lshl_b32 s36, s12, 7
 s_lshl_b32 s37, s13, 2
 s_add_u32 s36, s36, s37
 s_add_u32 s36, s36, {FC}
 v_mov_b32 v8, s15
 s_mov_b64 exec, 1
 buffer_store_dword v8, off, s[4:7], s36 sc1
 s_mov_b64 exec, -1
 s_branch L_Gtail
L_Gend:
''')
    if opt.get('defer', True): copies('e')
    A(f's_branch {XIT}')
    for j in range(4):
        A(f'L_Gr{j}:\n s_mov_b64 exec, vcc\n {gl(j)}\n s_mov_b64 exec, -1\n s_mov_b32 s56, {15 & ~((1<<j)-1)}\n s_waitcnt vmcnt(1)\n s_branch L_Gs{j+1}')
    for j in range(4):
        A(f'L_Gs{j}:\n s_bitcmp1_b32 s56, {j}\n s_cbranch_scc0 L_Gs{j+1}')
        A('\n'.join(chk(j)))
        A(f's_cbranch_vccz L_Gd{j}\n s_mov_b64 exec, vcc\n {gl(j)}\n s_mov_b64 exec, -1\n s_branch L_Gs{j+1}\nL_Gd{j}:')
        for b in range(6): A(smf(j,b))
        A(f's_bitset0_b32 s56, {j}')
    A('L_Gs4:'); G('r')
    A(f'''s_cmp_eq_u32 s56, 0
 s_cbranch_scc1 L_Gs5
 s_waitcnt vmcnt({opt.get('rd',1)})
 s_branch L_Gs0
L_Gs5:
 ds_write_b32 v61, v62''')
    for i in range(4): A(f'v_permlane32_swap_b32 v{24+i}, v{28+i}')
    A('s_branch L_Gfold')
    UB = lambda b: 64 + 8*b
    UM = lambda b: 36 + 4*b
    FD = lambda b: 96 + 4*b
    A(f'''
L_T:
 s_load_dwordx2 s[8:9], s[0:1], 80
 s_mov_b32 s10, 0x800000
 s_mov_b32 s11, 0x20000
 s_mov_b32 s39, {f2u(SCALE_B)}
 v_mul_u32_u24 v1, 12, v0
 s_lshl_b32 s36, s21, 12
 s_add_u32 s36, s36, s20
 s_add_u32 s36, s36, {SP}
 v_add_u32 v1, s36, v1
 v_lshlrev_b32 v59, 4, v0
 s_lshl_b32 s36, s21, 11
 s_add_u32 s36, s36, s20
 s_add_u32 s36, s36, {VP}
 v_add_u32 v2, s36, v59
 s_lshl_b32 s23, s12, 2
 s_add_u32 s23, s23, s21         ; head
 s_lshl_b32 s36, s23, 13
 s_add_u32 s36, s36, {VF}
 v_lshlrev_b32 v5, 9, v57
 v_lshl_add_u32 v5, v56, 4, v5
 v_add_u32 v5, s36, v5
 s_lshl_b32 s36, s13, 10
 s_add_u32 s36, s36, s20
 s_lshl_b32 s37, s21, 8
 s_add_u32 s36, s36, s37
 s_add_u32 s36, s36, {XP}
 v_and_b32 v7, 60, v0
 v_lshlrev_b32 v7, 2, v7
 v_add_u32 v7, s36, v7
 v_and_b32 v8, 3, v0
 v_lshl_add_u32 v7, v8, 17, v7
 v_mov_b32 v24, -1
 v_mov_b32 v25, -1
 v_mov_b32 v26, -1
 v_mov_b32 v27, -1
 v_and_b32 v59, 1, v57
 v_mul_u32_u24 v4, 1280, v59
 v_lshl_add_u32 v4, v56, 4, v4
 v_lshrrev_b32 v59, 1, v57
 v_lshl_add_u32 v4, v59, 3, v4
 s_mul_i32 s36, s21, 2560
 s_add_u32 s36, s36, {RT}
 v_add_u32 v4, s36, v4
 v_mov_b32 v63, 0x4444
 v_and_b32 v59, 4, v0
 v_cmp_ne_u32 vcc, 0, v59
 v_cndmask_b32 v63, v63, v58, vcc
 v_mov_b32 v58, {LFLAG}
 v_lshlrev_b32 v52, 11, v0
 s_lshl_b32 s36, s13, 7
 s_add_u32 s36, s36, s23         ; + 4x + j
 s_add_u32 s36, s36, {H1}
 v_add_u32 v52, s36, v52
 s_lshl_b32 s36, s12, 4
 s_add_u32 s36, s36, s13
 s_lshl_b32 s36, s36, 7
 s_lshl_b32 s37, s21, 4
 s_add_u32 s36, s36, s37
 s_add_u32 s36, s36, {H3}
 v_lshlrev_b32 v53, 2, v0
 v_add_u32 v53, s36, v53
 v_mov_b32 v55, 0
 v_mov_b32 v8, 0
 v_mov_b32 v9, 0
 v_mov_b32 v10, 0
 v_mov_b32 v11, 0
 ds_write_b128 v58, v[8:11]
''')
    if full:
        A(f'''s_lshl_b32 s36, s12, 4
 s_add_u32 s36, s36, s13
 s_lshl_b32 s36, s36, 8
 s_lshl_b32 s37, s21, 6
 s_add_u32 s36, s36, s37
 s_add_u32 s36, s36, {FL}
 v_lshlrev_b32 v12, 4, v0
 s_mov_b64 exec, 15
 buffer_store_dwordx4 v[8:11], v12, s[4:7], s36 offen sc1
 s_mov_b64 exec, -1
 v_lshlrev_b32 v28, 2, v0
 s_lshl_b32 s36, s12, 10
 s_add_u32 s36, s36, {FL}
 v_add_u32 v28, s36, v28''')
    for sl in range(8):
        A(f's_mov_b32 s36, {sl<<19}\n buffer_store_dwordx4 v[24:27], v7, s[4:7], s36 offen sc1')
    A(f'''
 v_mov_b32 v12, v56
 v_mov_b32 v13, v57
 v_bfe_u32 v14, v0, 3, 2
 s_lshl_b32 s36, s13, 4
 s_lshl_b32 s37, s21, 2
 s_add_u32 s36, s36, s37
 v_add_u32 v14, s36, v14
 s_lshl_b32 s36, s12, 15
 s_add_u32 s36, s36, {VF}
 v_lshl_add_u32 v56, v14, 7, s36
 v_subrev_u32 v15, {VF-KX}, v56
 v_cmp_lt_u32 vcc, 31, v0
 v_cndmask_b32 v56, v56, v15, vcc
 v_lshlrev_b32 v10, 14, v13
 v_lshl_add_u32 v10, v12, 3, v10
 s_lshl_b32 s36, s13, 7
 v_add_u32 v10, s36, v10
 s_waitcnt vmcnt(0) lgkmcnt(0)
 s_barrier
 s_cmp_lg_u32 s14, 4
 s_cbranch_scc1 L_Tw
 s_mov_b64 exec, 1
 v_mov_b32 v8, 128
 v_mov_b32 v9, 1
 global_atomic_add v8, v9, s[16:17] sc1
 s_mov_b64 exec, -1
L_Tw:
 s_lshl_b32 s36, s23, 18
''')
    for kap in range(4):
        for e in range(8):
            r = 64 + (kap*8+e)*2
            A(f's_add_u32 s37, s36, {(32*kap+e)*2048}\n buffer_load_dwordx2 v[{r}:{r+1}], v10, s[8:11], s37 offen')
    def vx_loads(s0, s1):
        for q in range(8):
            A(f'buffer_load_dwordx4 a[{64+4*q}:{67+4*q}], v5, s[4:7], {s0 if (q&3)<2 else s1} offen offset:{2048*(q&1)+256*(q>>2)} {opt.get("vxf","sc1")}')
    A('s_waitcnt vmcnt(0)')
    wo = lambda b, kap: 16*b + 4*kap
    for kap in range(4):
        for p in range(4):
            ra = 64 + (kap*8+2*p)*2; rb = ra + 2
            for b in range(4):
                A(f'v_perm_b32 v12, v{rb+b//2}, v{ra+b//2}, s{42+(b&1)}\n v_accvgpr_write_b32 a{wo(b,kap)+p}, v12')
    for b in range(4): A(f'v_mov_b32 v{UB(b)+2}, 0\n v_mov_b32 v{UB(b)+3}, 0')
    A(f'''s_cmp_lg_u32 s14, 4
 s_cbranch_scc1 L_Ti2
 v_mov_b32 v8, 128
L_Ti:
 global_load_dword v9, v8, s[16:17] sc1''')
    G('i')
    A(f'''s_waitcnt vmcnt(0)
 v_cmp_ne_u32 vcc, 128, v9
 s_cbranch_vccnz L_Ti''')
    def kvpoll(t, mask, so):
        A(f's_mov_b64 exec, {mask}\nL_kv{t}:\n buffer_load_dword v9, v28, s[4:7], {so} offen sc1')
        G('i')
        A(f's_waitcnt vmcnt(0)\n v_cmp_eq_u32 vcc, 0, v9\n s_cbranch_vccnz L_kv{t}\n s_mov_b64 exec, -1')
    if full: kvpoll('0', '0xffff', '0')
    A('''L_Ti2:
 s_barrier
 s_mov_b32 s36, 0
 s_mov_b32 s37, 4096''')
    vx_loads('s36','s37')
    A('''s_waitcnt vmcnt(0)
L_Tux:''')
    for kap in range(4):
        for H in range(2):
            for b in range(4):
                d = 96 + (H*4+b)*4
                c = '0' if kap == 0 else f'v[{d}:{d+3}]'
                q = H*4+kap
                A(f'v_mfma_f32_16x16x32_bf16 v[{d}:{d+3}], a[{64+4*q}:{67+4*q}], a[{wo(b,kap)}:{wo(b,kap)+3}], {c}')
    for r in range(36,52): A(f'v_mov_b32 v{r}, 0')
    for H in range(2):
        for b in range(4):
            d = 96 + (H*4+b)*4
            A(f'v_cvt_pk_bf16_f32 v{UB(b)+4*H}, v{d}, v{d+1}\n v_cvt_pk_bf16_f32 v{UB(b)+4*H+1}, v{d+2}, v{d+3}')
    for r in range(96,112): A(f'v_mov_b32 v{r}, 0')
    A(f'''s_and_b32 s45, s15, 3
 s_lshl_b32 s45, s45, 17
 s_add_u32 s38, s15, 1           ; tag
 s_and_b32 s46, s38, 3
 s_lshl_b32 s46, s46, 20
 s_add_u32 s24, s46, {4<<17}
 s_xor_b32 s25, s46, {2<<20}
 s_xor_b32 s26, s24, {2<<20}
 s_min_u32 s36, s38, 63
 s_lshl_b32 s36, s36, 18
 s_add_u32 s37, s36, 4096
 v_mov_b32 v54, s38
 s_add_u32 s48, s15, 2
 s_min_u32 s48, s48, 63
 s_lshl_b32 s48, s48, 18''')
    if full:
        A(f's_and_b32 s47, s48, {7<<18}\n s_cbranch_scc1 L_Tf\n s_lshr_b32 s47, s48, 14')
        kvpoll('1', '15', 's47')
    A('''L_Tf:
 ds_read_b128 v[8:11], v58''')
    G('f')
    A('''s_waitcnt lgkmcnt(0)
 v_min3_u32 v8, v8, v9, v10
 v_min_u32 v8, v8, v11
 v_cmp_ne_u32 vcc, s38, v8
 s_cbranch_vccnz L_Tf''')
    def xreset():
        A(f's_mov_b32 exec_lo, {RM}\n s_mov_b32 exec_hi, {RM}')
        A('buffer_store_dwordx4 v[24:27], v7, s[4:7], s25 offen sc1')
        if R == 8: A('buffer_store_dwordx4 v[24:27], v7, s[4:7], s26 offen sc1')
        A('s_mov_b64 exec, -1')
    if opt.get('xr',0) == 1: xreset()
    if not opt.get('novx'): vx_loads('s36','s37')
    A(f'''s_barrier                       ; barrier G
 s_cmp_eq_u32 s15, 63
 s_cbranch_scc1 {XIT}
 s_setprio 1''')
    stamp(0)
    if opt.get('h3', True):
        A('s_mov_b64 exec, 0xf\nL_Th:\n buffer_load_dword v55, v53, s[4:7], 0 offen sc1')
        G('h')
        A(f's_waitcnt vmcnt({opt.get("h3d",2)})\n v_cmp_ne_u32 vcc, s38, v55\n s_cbranch_vccnz L_Th\n s_mov_b64 exec, -1')
    stamp(5)
    def s_issue():
        for d in range(4): A(f'buffer_load_dwordx3 v[{112+4*d}:{114+4*d}], v1, s[4:7], s45 offen offset:{1024*d} sc1')
    A('L_Tv:')
    for k in range(2): A(f'buffer_load_dwordx4 v[{16+4*k}:{19+4*k}], v2, s[4:7], s45 offen offset:{1024*k} sc1')
    s_issue()
    G('v')
    A('''s_waitcnt vmcnt(4)
 v_max3_u32 v8, v16, v17, v18
 v_max3_u32 v9, v19, v20, v21
 v_max3_u32 v8, v8, v22, v23
 v_max_u32 v8, v8, v9
 v_cmp_eq_u32 vcc, -1, v8
 s_cbranch_vccnz L_Tv''')
    stamp(1)
    um = [f'v_smfmac_f32_16x16x64_bf16 v[{UM(b)}:{UM(b)+3}], v[{16+4*k}:{19+4*k}], a[{16*b+8*k}:{16*b+8*k+7}], v63' for k in range(2) for b in range(4)]
    uc = [x for b in range(4) for x in (f'v_cvt_pk_bf16_f32 v{UB(b)+6}, v{UM(b)}, v{UM(b)+1}', f'v_cvt_pk_bf16_f32 v{UB(b)+7}, v{UM(b)+2}, v{UM(b)+3}')]
    def sums(d):
        L = []
        for r in range(3):
            if d == 0: L += [f'v_lshlrev_b32 v{8+2*r}, 16, v{112+r}', f'v_and_b32 v{9+2*r}, 0xffff0000, v{112+r}']
            else: L += [f'v_dot2c_f32_bf16 v{8+2*r}, s40, v{112+4*d+r}', f'v_dot2c_f32_bf16 v{9+2*r}, s41, v{112+4*d+r}']
        return L
    mx = ['v_max3_u32 v14, v112, v113, v114', 'v_max3_u32 v14, v14, v116, v117', 'v_max3_u32 v14, v14, v118, v120', 'v_max3_u32 v14, v14, v121, v122',
          'v_max3_u32 v15, v124, v125, v126', 'v_max_u32 v14, v14, v15']
    s0, s1, s2, s3 = sums(0), sums(1), sums(2), sums(3)
    seq = [um[0], um[1], 's_waitcnt vmcnt(3)', s0[0], s0[1], um[2], s0[2], s0[3], um[3], s0[4], s0[5], um[4], mx[0], 's_waitcnt vmcnt(2)', s1[0], um[5], s1[1], s1[2], um[6], s1[3], s1[4], um[7], s1[5], mx[1],
           's_waitcnt vmcnt(1)'] + s2 + [mx[2], mx[3]] + uc + ['s_waitcnt vmcnt(0)'] + s3 + [mx[4], mx[5]]
    A('\n'.join(seq))
    A('''L_Ts:
 v_cmp_eq_u32 vcc, -1, v14
 v_max3_f32 v16, v8, v9, v10
 v_max3_f32 v16, v16, v11, v12
 v_max_f32 v16, v16, v13
 s_cbranch_vccnz L_Tsr''')
    if opt.get('touch', True): A('buffer_load_dword v57, v56, s[4:7], s48 offen sc1')
    def hint1():
        if opt.get('h1', False): A('s_mov_b64 exec, 0xff\n buffer_store_byte v54, v52, s[4:7], 0 offen sc1\n s_mov_b64 exec, -1')
    stamp(2)
    if opt.get('h1p',0) == 0: hint1()
    def xred(op, a, b):
        A(f'''{op}_dpp v{b}, v{a}, v{a} row_ror:8 row_mask:0xf bank_mask:0xf
 {op}_dpp v{a}, v{a}, v{a} row_ror:8 row_mask:0xf bank_mask:0xf
 v_permlane16_swap_b32 v{a}, v{b}
 {op} v{b+1}, v{a}, v{b}
 {op} v{a}, v{a}, v{b}
 v_permlane32_swap_b32 v{a}, v{b+1}
 {op} v{a}, v{a}, v{b+1}''')
    xred('v_max_f32', 16, 17)
    if opt.get('h1p',0) == 1: hint1()
    A('v_mul_f32 v16, s39, v16')
    for r in range(6): A(f'v_fma_f32 v{8+r}, v{8+r}, s39, -v16')
    for r in range(6): A(f'v_exp_f32 v{8+r}, v{8+r}')
    A('''v_add_f32 v16, v8, v9
 v_add_f32 v17, v10, v11
 v_add_f32 v16, v16, v17
 v_add_f32 v17, v12, v13
 v_add_f32 v16, v16, v17''')
    if opt.get('h1p',0) == 2: hint1()
    xred('v_add_f32', 16, 17)
    if opt.get('h1p',0) == 3: hint1()
    A('v_rcp_f32 v16, v16')
    for r in range(6): A(f'v_mul_f32 v{8+r}, v{8+r}, v16')
    A('''v_cvt_pk_bf16_f32 v20, v8, v9
 v_cvt_pk_bf16_f32 v22, v10, v11
 v_cvt_pk_bf16_f32 v21, v12, v13
 v_cvt_pk_bf16_f32 v23, v12, v13''')
    for b in (0,2,1,3):
        A(f'v_smfmac_f32_16x16x64_bf16 v[{FD(b)}:{FD(b)+3}], v[20:23], v[{UB(b)}:{UB(b)+7}], v3')
    for i in range(4): A(f'v_permlane32_swap_b32 v{FD(0)+i}, v{FD(2)+i}')
    for i in range(4): A(f'v_add_f32 v{8+2*i}, v{FD(0)+i}, v{FD(2)+i}')
    for i in range(4): A(f'v_permlane32_swap_b32 v{FD(1)+i}, v{FD(3)+i}')
    for i in range(4): A(f'v_add_f32 v{9+2*i}, v{FD(1)+i}, v{FD(3)+i}')
    A('ds_write2_b64 v4, v[8:9], v[10:11] offset0:0 offset1:40\n ds_write2_b64 v4, v[12:13], v[14:15] offset0:80 offset1:120')
    stamp(3)
    A('''s_waitcnt lgkmcnt(0)
 s_setprio 3
 s_barrier                       ; barrier T
 ds_read2st64_b64 v[8:11], v6 offset0:0 offset1:5
 ds_read2st64_b64 v[12:15], v6 offset0:10 offset1:15''')
    lgkm(1)
    A('''v_add_f32 v8, v8, v10
 v_add_f32 v9, v9, v11''')
    lgkm(0)
    A('''v_add_f32 v12, v12, v14
 v_add_f32 v13, v13, v15
 v_add_f32 v8, v8, v12
 v_add_f32 v9, v9, v13
 v_cvt_pk_bf16_f32 v8, v8, v9
 v_min_u32 v8, s44, v8''')
    if R > 1: A('v_mov_b32_dpp v12, v8 quad_perm:[0,0,0,0] row_mask:0xf bank_mask:0xf')
    D0 = 12 if R > 1 else 8
    for k in range(1,4): A(f'v_mov_b32_dpp v{D0+k}, v8 quad_perm:[{k},{k},{k},{k}] row_mask:0xf bank_mask:0xf')
    if R < 4: A(f's_mov_b32 exec_lo, {RM}\n s_mov_b32 exec_hi, {RM}')
    A(f'buffer_store_dwordx4 v[{D0}:{D0+3}], v7, s[4:7], s46 offen sc1')
    if R == 8: A(f'buffer_store_dwordx4 v[{D0}:{D0+3}], v7, s[4:7], s24 offen sc1')
    stamp(4)
    A('s_setprio 0')
    if opt.get('xr',0) == 0: xreset()
    A('s_mov_b64 exec, -1')
    flush_ts(6, 12)
    A('''s_add_u32 s15, s15, 1
 s_branch L_Tux
L_Tsr:''')
    s_issue(); G('s')
    A('s_waitcnt vmcnt(0)')
    A('\n'.join(s0 + s1 + s2 + s3 + mx))
    A('s_branch L_Ts')

def gen_test(opt):
    A = Asm()
    A('''
 s_load_dwordx2 s[4:5], s[0:1], 120
 s_load_dwordx2 s[16:17], s[0:1], 112
 s_getreg_b32 s12, hwreg(HW_REG_XCC_ID, 0, 4)
 s_mov_b32 s6, 0x10000000
 s_mov_b32 s7, 0x20000
 v_lshrrev_b32 v3, 6, v0
 v_readfirstlane_b32 s14, v3
 v_and_b32 v0, 63, v0
 s_and_b32 s12, s12, 7
 s_waitcnt lgkmcnt(0)
 s_cmp_lg_u32 s14, 0
 s_cbranch_scc1 L_r1
 s_lshl_b32 s10, s12, 2
 v_mov_b32 v8, s10
 v_mov_b32 v9, 1
 s_mov_b64 exec, 1
 global_atomic_add v10, v8, v9, s[16:17] sc0
 s_waitcnt vmcnt(0)
 v_mov_b32 v11, 0
 ds_write_b32 v11, v10
 s_mov_b64 exec, -1
 s_waitcnt lgkmcnt(0)
L_r1:
 s_barrier
 v_mov_b32 v11, 0
 ds_read_b32 v10, v11
 s_waitcnt lgkmcnt(0)
 v_readfirstlane_b32 s13, v10
 s_barrier
 s_cmp_ge_u32 s13, 16
 s_cbranch_scc1 L_end
''')
    gen_chain(A, opt)
    A('L_end:')
    n = A.pad_fast(opt.get('mt', True))
    return A.text()
if __name__ == '__main__':
    t = gen_test({})
    print(t)
```

```python
import sys
from asmlib import *
import chain as C
from bulk import *
NAME='gated_mix__grouped_kv_mqa__memory_aug_recurrent_mem_tr__prompt'
def gen(opt):
    A=Asm()
    guard=opt.get('guard',True)
    GUARD[0]='s_add_u32 s61, s61, 1\n s_cmp_gt_u32 s61, 100000\n s_cbranch_scc1 LBL' if guard else ''
    G2='s_add_u32 s62, s62, 1\n s_cmp_gt_u32 s62, 400\n s_cbranch_scc1 L_end' if guard else ''
    A(f'''
 s_load_dwordx2 s[4:5], s[0:1], 120
 s_load_dwordx2 s[16:17], s[0:1], 112
 s_getreg_b32 s12, hwreg(HW_REG_XCC_ID, 0, 4)
 s_mov_b32 s6, 0x10000000
 s_mov_b32 s7, 0x20000
 v_lshrrev_b32 v3, 6, v0
 v_readfirstlane_b32 s14, v3
 v_and_b32 v0, 63, v0
 s_and_b32 s12, s12, 7
 s_mov_b32 s63, 0
 s_mov_b32 s61, 0
 s_mov_b32 s62, 0
 v_mov_b32 v11, {LCTL}
 s_waitcnt lgkmcnt(0)
 s_cmp_lg_u32 s14, 0
 s_cbranch_scc1 L_r1
 s_lshl_b32 s10, s12, 2
 v_mov_b32 v8, s10
 v_mov_b32 v9, 1
 s_mov_b64 exec, 1
 global_atomic_add v10, v8, v9, s[16:17] sc0 sc1
 s_waitcnt vmcnt(0)
 ds_write_b32 v11, v10
 s_mov_b64 exec, -1
 s_waitcnt lgkmcnt(0)
L_r1:
 s_barrier
 ds_read_b32 v10, v11
 s_waitcnt lgkmcnt(0)
 v_readfirstlane_b32 s13, v10
 s_cmp_ge_u32 s13, 32
 s_cbranch_scc1 L_end
 s_sub_u32 s40, s13, 16
 s_cbranch_scc0 L_disp
''')
    o=dict(opt); o['full']=True
    C.gen_chain(A,o)
    A(f'''L_cend:
 s_setprio 0
 s_lshl_b32 s36, s12, 7
 s_lshl_b32 s37, s13, 2
 s_add_u32 s36, s36, s37
 s_add_u32 s36, s36, {FC}
 s_mov_b32 s37, 1
 s_mov_b32 s39, 64
 s_mov_b32 s63, 1
 s_mov_b32 s61, 0
 s_mov_b32 s62, 0
L_next:
 {G2}
 s_waitcnt vmcnt(0)
 s_barrier
 v_mov_b32 v11, {LCTL}
 s_cmp_lg_u32 s14, 0
 s_cbranch_scc1 L_n2
 s_mov_b64 exec, 1
 s_lshl_b32 s10, s12, 2
 s_add_u32 s10, s10, 32
 v_mov_b32 v8, s10
 v_mov_b32 v9, 1
 global_atomic_add v10, v8, v9, s[16:17] sc0 sc1
 s_cmp_lg_u32 s63, 0
 s_cbranch_scc1 L_n0
 v_mov_b32 v8, 128
L_ni:
 global_load_dword v9, v8, s[16:17] sc1
 s_waitcnt vmcnt(0)
 {GUARD[0].replace('LBL','L_n0')}
 v_cmp_ne_u32 vcc, 128, v9
 s_cbranch_vccnz L_ni
L_n0:
 s_cmp_eq_u32 s37, 0
 s_cbranch_scc1 L_n1
 s_mov_b32 exec_lo, s37
 v_lshlrev_b32 v8, 7, v0
 v_mov_b32 v9, s39
 buffer_store_dword v9, v8, s[4:7], s36 offen sc1
 s_mov_b64 exec, 1
 s_waitcnt vmcnt(1)
 s_branch L_n3
L_n1:
 s_waitcnt vmcnt(0)
L_n3:
 ds_write_b32 v11, v10
 s_mov_b64 exec, -1
 s_waitcnt lgkmcnt(0)
L_n2:
 s_mov_b32 s63, 1
 s_barrier
 ds_read_b32 v10, v11
 s_waitcnt lgkmcnt(0)
 v_readfirstlane_b32 s40, v10
 s_add_u32 s40, s40, 16
L_disp:
 s_mov_b32 s37, 1
 s_mov_b32 s39, 1''')
    srd(A,8,0,0x400000)
    def kvq(mat_code, lbl, bm_shift, colcode):
        pass
    def t_kv0():
        return f'''s_lshr_b32 s33, s40, 3
 s_lshl_b32 s24, s33, 18
 s_lshl_b32 s27, s33, 20
 s_and_b32 s34, s40, 3
 s_lshl_b32 s35, s12, 2
 s_add_u32 s34, s34, s35
 s_lshl_b32 s25, s34, 8
 s_lshl_b32 s34, s34, 13
 s_add_u32 s27, s27, s34
 s_lshl_b32 s36, s12, 10
 s_lshl_b32 s34, s40, 2
 s_add_u32 s36, s36, s34
 s_add_u32 s36, s36, {FKV}
 s_bfe_u32 s41, s40, 0x10002
 s_mov_b32 s42, 0
 s_branch L_bw'''
    def big(rbcode, matcode, fl):
        return f'''{rbcode}
 {matcode}
 s_lshl_b32 s24, s33, 19
 s_lshl_b32 s27, s33, 21
 s_and_b32 s34, s40, 1
 s_lshl_b32 s35, s12, 1
 s_add_u32 s34, s34, s35
 s_lshl_b32 s25, s34, 9
 s_lshl_b32 s34, s34, 14
 s_add_u32 s27, s27, s34
 s_lshl_b32 s36, s12, 3
 s_add_u32 s36, s36, s33
 s_lshl_b32 s36, s36, 7
 {fl}
 s_add_u32 s36, s36, s34
 s_add_u32 s36, s36, {FKV}
 s_mov_b32 s42, 1
 s_branch L_bw'''
    t_kv=lambda rb0: big(f's_lshr_b32 s33, s40, 2\n s_add_u32 s33, s33, {rb0}', 's_bfe_u32 s41, s40, 0x10001', 's_and_b32 s34, s40, 3\n s_lshl_b32 s34, s34, 2')
    t_q=lambda rb0: big(f's_lshr_b32 s33, s40, 1\n s_add_u32 s33, s33, {rb0}', 's_mov_b32 s41, 2', 's_and_b32 s34, s40, 1\n s_lshl_b32 s34, s34, 2\n s_add_u32 s34, s34, 64')
    t_aq=f'''s_load_dwordx2 s[20:21], s[0:1], 8
 s_mov_b32 s22, 0x200000
 s_mov_b32 s23, 0x20000
 s_lshl_b32 s24, s12, 19
 s_lshl_b32 s25, s40, 9
 s_lshl_b32 s27, s40, 14
 s_add_u32 s27, s27, s24
 s_add_u32 s27, s27, {QA}
 s_mov_b32 s28, 65536
 s_mov_b32 s32, 2048
 s_lshl_b32 s36, s12, 7
 s_lshl_b32 s34, s40, 2
 s_add_u32 s36, s36, s34
 s_add_u32 s36, s36, {FAQ}
 s_branch L_gemmb'''
    t_at='''s_lshr_b32 s24, s40, 1
 s_lshl_b32 s33, s12, 3
 s_add_u32 s24, s24, s33
 s_and_b32 s25, s40, 1
 s_branch L_attA'''
    t_st='''s_lshr_b32 s33, s40, 2
 s_and_b32 s34, s40, 1
 s_bitcmp1_b32 s40, 1
 s_cbranch_scc1 L_st1
 s_lshl_b32 s24, s33, 1
 s_add_u32 s24, s24, s34
 s_branch L_attB
L_st1:
 s_lshl_b32 s24, s33, 2
 s_lshl_b32 s25, s12, 1
 s_add_u32 s25, s25, s34
 s_lshl_b32 s25, s25, 7
 s_branch L_op4'''
    T=[(16,t_kv0()),(1,'s_branch L_akv'),(4,t_kv(1)),(4,t_aq),(24,t_kv(2)),(16,t_at),(16,t_q(0)),(64,t_st)]
    for i,(n,code) in enumerate(T):
        A(f's_cmp_ge_u32 s40, {n}\n s_cbranch_scc1 L_d{i}\n {code}\nL_d{i}:\n s_sub_u32 s40, s40, {n}')
    A(f'''s_branch L_end
L_bw:
 s_lshl_b32 s33, s41, 3
 s_add_u32 s33, s33, 64
 s_cmp_eq_u32 s41, 2
 s_cselect_b32 s33, 56, s33
 s_load_dwordx2 s[20:21], s[0:1], s33
 s_mov_b32 s22, 0x800000
 s_mov_b32 s23, 0x20000
 s_add_u32 s41, s41, 1
 s_lshl_b32 s41, s41, 24
 s_add_u32 s27, s27, s41
 s_mov_b32 s28, 0x40000
 s_mov_b32 s32, 8192
 s_cmp_eq_u32 s42, 0
 s_cbranch_scc1 L_gemms
''')
    gemm(A,'b',4,2,2,4,2)
    gemm(A,'s',2,1,2,4,4)
    akv(A); attnA(A); attnB(A); oproj(A,'4',4)
    A('L_end:')
    A.pad_fast(opt.get('mt',True))
    return A.text()
def full_text(opt):
    ref=open(f'cdna_kernels/{NAME}.s.ref').read()
    head,rest=ref.split(f'{NAME}_kernel:\n',1)
    tail=rest[rest.index('s_endpgm'):]
    head=head.replace('; @launch grid=(8192,1,1) block=(256,1,1) lds=0',f'; @launch grid=(256,1,1) block=(512,1,1) lds={LDSZ}')
    tail=tail.replace('accum_offset 256','accum_offset 128')
    return head+f'{NAME}_kernel:\n'+gen(opt)+tail
if __name__=='__main__':
    opt=eval(sys.argv[1]) if len(sys.argv)>1 else {}
    out=sys.argv[2] if len(sys.argv)>2 else f'cdna_kernels/{NAME}.s'
    open(out,'w').write(full_text(opt))
```

```python
import re
TRANS = ('v_exp_f32','v_log_f32','v_rcp_f32','v_rsq_f32','v_sqrt_f32','v_sin_f32','v_cos_f32','v_exp_f16','v_rcp_f16','v_rcp_iflag_f32')
def regs(tok):
    tok = tok.strip()
    if tok.startswith('-'): tok = tok[1:]
    if tok.startswith('|') and tok.endswith('|'): tok = tok[1:-1]
    m = re.fullmatch(r'(abs|neg)\((.*)\)', tok)
    if m: tok = m.group(2)
    m = re.fullmatch(r'([vas])(\d+)', tok)
    if m: return {(m.group(1), int(m.group(2)))}
    m = re.fullmatch(r'([vas])\[(\d+):(\d+)\]', tok)
    if m: return {(m.group(1), i) for i in range(int(m.group(2)), int(m.group(3))+1)}
    if tok in ('vcc','vcc_lo','vcc_hi'): return {('s','vcc')}
    if tok in ('exec','exec_lo','exec_hi'): return {('s','exec')}
    if tok == 'm0': return {('s','m0')}
    return set()
class I:
    def __init__(s, text):
        s.text = text
        t = text.split(';')[0].strip()
        s.label = None; s.op = None
        if not t: return
        if t.endswith(':'): s.label = t[:-1]; return
        if t.startswith('.'): return
        p = t.split(None, 1); s.op = op = p[0]
        rest = p[1] if len(p) > 1 else ''
        rest = re.sub(r':\[([^\]]*)\]', lambda m: ':[' + m.group(1).replace(',', '_') + ']', rest)
        toks = [x.strip() for x in rest.split(',')]
        mods = ''
        if toks:
            q = toks[-1].split(None, 1)
            if q:
                toks[-1] = q[0]; mods = q[1] if len(q) > 1 else ''
        s.mods = mods; s.toks = toks
        R = [regs(x) for x in toks]
        U = lambda L: set().union(*L) if L else set()
        s.mfma = op.startswith('v_mfma') or op.startswith('v_smfmac')
        s.valu = op.startswith('v_') and not s.mfma
        s.vmem = op.startswith(('buffer_','global_','flat_'))
        s.ds = op.startswith('ds_')
        s.salu = op.startswith('s_')
        s.trans = any(op.startswith(x) for x in TRANS)
        s.dot = op.startswith('v_dot')
        s.dpp = ('dpp' in op) or any(k in mods for k in ('row_ror','quad_perm','row_shr','row_shl','row_bcast','row_mirror','row_half_mirror','row_newbcast'))
        s.perml = op.startswith('v_permlane')
        s.w = set(); s.r = set(); s.srcc = set(); s.ab = set(); s.stdata = set()
        s.ldsdma = False
        if s.mfma:
            s.passes = 8 if '32x32' in op else 4
            s.w = R[0]
            if op.startswith('v_smfmac'):
                s.srcc = R[0]; s.ab = R[1] | R[2] | R[3]
            else:
                s.srcc = R[3]; s.ab = R[1] | R[2]
            s.r = s.srcc | s.ab
        elif s.valu:
            if s.perml and 'swap' in op: s.w = R[0] | R[1]; s.r = R[0] | R[1]
            elif op.startswith('v_cmpx'): s.w = {('s','exec')} | R[0]; s.r = U(R[1:])
            elif op.startswith(('v_add_co','v_sub_co','v_addc_co','v_subb_co','v_subrev_co','v_div_scale','v_mad_u64_u32')): s.w = R[0] | R[1]; s.r = U(R[2:])
            elif op == 'v_nop': pass
            else:
                s.w = R[0]; s.r = U(R[1:])
                if op.startswith(('v_fmac','v_dot2c','v_pk_fmac','v_writelane')) or s.dpp or 'op_sel' in mods or 'sdwa' in op: s.r |= R[0]
                if op.startswith('v_cndmask') and len(toks) == 3: s.r |= {('s','vcc')}
        elif s.vmem:
            lds = ('_lds_' in op) or (' lds' in ' ' + mods)
            s.ldsdma = lds
            if lds: s.r = U(R) | {('s','m0')}
            elif '_load' in op:
                s.w = R[0]; s.r = U(R[1:])
                if 'd16' in op: s.r |= R[0]
            elif '_atomic' in op:
                if op.startswith('global') and 'sc0' in mods: s.w = R[0]; s.r = U(R[1:])
                elif op.startswith('buffer') and 'sc0' in mods: s.w = R[0]; s.r = U(R)
                else: s.r = U(R)
            else:
                s.r = U(R)
                if 'x3' in op or 'x4' in op:
                    s.stdata = R[0] if op.startswith('buffer') else R[1]
        elif s.ds:
            if op.startswith(('ds_read','ds_bpermute','ds_permute','ds_swizzle')) or '_rtn' in op: s.w = R[0]; s.r = U(R[1:])
            else: s.r = U(R)
        elif s.salu:
            if op.startswith(('s_cmp','s_cbranch','s_branch','s_waitcnt','s_nop','s_barrier','s_setprio','s_endpgm','s_bitcmp','s_sleep','s_setreg')): s.r = U(R)
            else:
                s.w = R[0]; s.r = U(R[1:])
                if 'saveexec' in op: s.w |= {('s','exec')}
    def states(s):
        if s.op is None: return 0
        if s.op == 's_nop': return int(s.toks[0], 0) + 1
        return 1
def vec(S): return {x for x in S if x[0] in 'va'}
def sca(S): return {x for x in S if x[0] == 's'}
def need(p, c):
    n = 0
    if p.mfma:
        D = p.w
        big = 12 if p.passes == 8 else 8
        if c.mfma:
            if D & c.ab: n = max(n, big)
            if D & c.srcc and not (c.srcc == D and c.passes == p.passes): n = max(n, big - 2)
            if D & c.w and not (D & c.srcc): n = max(n, big)
        elif (c.valu or c.vmem or c.ds) and (D & (c.r | c.w)): n = max(n, big)
        if c.valu and (p.srcc & c.w): n = max(n, 7 if p.passes == 8 else 3)
    if p.valu:
        vw = vec(p.w); sw = sca(p.w)
        if c.mfma and (vw & c.r): n = max(n, 3 if p.dot else 2)
        if c.valu and (c.dpp or c.perml) and (vw & c.r): n = max(n, 2)
        if c.valu and c.op.startswith(('v_readlane','v_readfirstlane')) and (vw & c.r): n = max(n, 1)
        if p.trans and c.valu and not c.trans and (vw & c.r): n = max(n, 1)
        if p.trans and (c.vmem or c.ds) and (vw & c.r): n = max(n, 1)
        if p.dot and (vw & (c.r | c.w)):
            if not (c.op == p.op and not (vw & (regs(c.toks[1]) | regs(c.toks[2])))): n = max(n, 3)
        if ('op_sel' in p.mods or 'sdwa' in p.op or 'dst_sel' in p.mods) and c.valu and (vw & c.r): n = max(n, 1)
        if sw:
            if c.vmem and (sw & c.r): n = max(n, 5)
            if c.valu and (sw & c.r): n = max(n, 4 if c.op.startswith(('v_readlane','v_writelane')) else 2)
            if ('s','exec') in sw:
                if c.mfma or c.perml or (c.valu and c.op.startswith(('v_readlane','v_readfirstlane','v_writelane'))): n = max(n, 4)
                if c.dpp: n = max(n, 5)
    if p.vmem and p.stdata and (p.stdata & c.w): n = max(n, 2)
    if p.salu and ('s','m0') in p.w and (c.ldsdma or (c.op or '').startswith('s_movrel')): n = max(n, 1)
    return n
W = 14
class Asm:
    def __init__(s): s.L = []
    def __call__(s, text):
        for l in text.split('\n'):
            if l.strip(): s.L.append(I(' ' + l.strip() if not l.strip().endswith(':') else l.strip()))
    def pad_fast(s, mfma_time=True):
        L = s.L; total = 0
        while True:
            lab = {x.label: i for i, x in enumerate(L) if x.label}
            preds = {}
            for i, x in enumerate(L):
                if x.op and x.op.startswith(('s_cbranch','s_branch')):
                    preds.setdefault(lab[x.toks[0]], []).append(i)
            extra = {}
            def back(i, dist, nxt, c, seen):
                miss = 0
                while i >= 0 and dist < W:
                    x = L[i]
                    if x.label:
                        for j in preds.get(i, []):
                            if (j, dist, nxt) not in seen:
                                seen.add((j, dist, nxt)); miss = max(miss, back(j, dist, nxt, c, seen))
                        k = i - 1
                        while k >= 0 and L[k].op is None and not L[k].label: k -= 1
                        if k >= 0 and L[k].op in ('s_branch','s_endpgm'): return miss
                    elif x.op:
                        if x.mfma and mfma_time:
                            if nxt is not None: dist = max(dist, nxt + x.passes)
                            nxt = dist
                        miss = max(miss, need(x, c) - dist)
                        dist += x.states() + extra.get(i, 0)
                    i -= 1
                return miss
            for i, c in enumerate(L):
                if c.op and c.op != 's_nop' and (c.valu or c.mfma or c.vmem or c.ds or c.w):
                    m = back(i - 1, 0, None, c, set())
                    if m > 0: extra[i] = m
            if not extra: return total
            N = []
            for i, c in enumerate(L):
                if i in extra: N.append(I(f' s_nop {extra[i]-1}')); total += 1
                N.append(c)
            s.L = L = N
    def text(s): return '\n'.join(x.text for x in s.L) + '\n'

TLC=[0]
def tlog(A, code, wave, on):
    if not on: return
    TLC[0]+=1; n=TLC[0]
    A(f'''s_cmp_lg_u32 s14, {wave}
 s_cbranch_scc1 L_tl{n}
 s_memrealtime s[96:97]
 s_memtime s[100:101]
 v_readfirstlane_b32 s98, v126
 v_readfirstlane_b32 s99, v127
 s_waitcnt lgkmcnt(0)
 s_mov_b64 exec, 1
 v_mov_b32 v126, {code}
 v_mov_b32 v127, s96
 buffer_store_dwordx2 v[126:127], off, s[4:7], s95
 s_nop 4
 v_mov_b32 v126, s100
 buffer_store_dword v126, off, s[4:7], s95 offset:8
 s_add_u32 s95, s95, 16
 s_nop 4
 v_mov_b32 v126, s98
 v_mov_b32 v127, s99
 s_mov_b64 exec, -1
L_tl{n}:''')
```

```python
from asmlib import *
from chain2 import KM, VM, KX, VF, QX, FL, FC, f2u
QA=0x6000000; KVA=0x6400000; GT=0x6480000; OP=0x7000000; OPS=320*1024
LDSZ=163840; LCTL=LDSZ-64
FKV=FL; FA=FL+64*128; FAQ=FL+65*128; FO=FL+128*128
LOG2E=1.4426950408889634
MF='v_mfma_f32_32x32x16_bf16'
GUARD=['']; TL=[False]; SLP=[4]
def R(p,b,n): return f'{p}[{b}:{b+n-1}]'
def interleave(M, O):
    out=[]; n=len(M); k=0
    for i,m in enumerate(M):
        out.append(m)
        e=(len(O)*(i+1))//n
        out+=O[k:e]; k=e
    return out
def srd(A, s, koff, size):
    A(f's_load_dwordx2 s[{s}:{s+1}], s[0:1], {koff}\n s_mov_b32 s{s+2}, {size}\n s_mov_b32 s{s+3}, 0x20000')
def waitflags(A, tag, mask, va='v2', vt='v3', bar=True):
    A(f'''s_cmp_lg_u32 s14, 0
 s_cbranch_scc1 L_wf2{tag}
 s_mov_b64 exec, {mask}
L_wf{tag}:
 buffer_load_dword v1, {va}, s[4:7], 0 offen sc1
 s_waitcnt vmcnt(0)
 v_cmp_lt_u32 vcc, v1, {vt}
 s_cbranch_vccz L_wf1{tag}
 {GUARD[0].replace('LBL','L_wf1'+tag)}
 s_sleep {SLP[0]}
 s_branch L_wf{tag}
L_wf1{tag}:
 s_mov_b64 exec, -1
L_wf2{tag}:''')
    tlog(A,'1000',0,TL[0])
    if bar: A('s_barrier')

def gemm(A, tag, MB, NB, WM, WN, NS):
    BM=32*MB*WM; BN=32*NB*WN; XI=BM//64; WROW=BN*2; RPI=1024//WROW; WI=8//RPI
    XS=BM*128; WS=BN*128; WB=NS*XS
    assert WM*WN==8 and NS*(XS+WS)<=LCTL
    lw={256:5,128:4,64:3}[BN]
    A(f'L_gemm{tag}:')
    A(f'''s_mul_i32 s33, s14, {XI*8}
 v_lshrrev_b32 v16, 3, v0
 v_add_u32 v16, s33, v16
 v_and_b32 v17, 7, v0''')
    for i in range(XI):
        A(f'''v_add_u32 v18, {8*i}, v16
 v_bfe_u32 v19, v18, 1, 3
 v_xor_b32 v19, v19, v17
 v_lshlrev_b32 v18, 11, v18
 v_lshl_add_u32 v{1+i}, v19, 4, v18''')
        if i: A(f'v_subrev_u32 v{1+i}, {1024*i}, v{1+i}')
    A(f'''s_lshl_b32 s33, s14, 3
 v_lshrrev_b32 v16, {lw}, v0
 v_add_u32 v16, s33, v16
 v_and_b32 v17, {(1<<lw)-1}, v0''')
    for i in range(WI):
        A(f'v_add_u32 v18, {RPI*i}, v16')
        A('v_and_b32 v19, 3, v18' if BN>=128 else 'v_bfe_u32 v19, v18, 1, 1')
        A(f'''v_lshlrev_b32 v19, 2, v19
 v_xor_b32 v19, v19, v17
 v_mul_u32_u24 v18, s32, v18
 v_lshl_add_u32 v{5+i}, v19, 4, v18''')
        if i: A(f'v_subrev_u32 v{5+i}, {1024*i}, v{5+i}')
    A(f's_lshl_b32 s26, s32, 6\n s_mul_i32 s30, s14, {XI*1024}\n s_mul_i32 s31, s14, {WI*1024}\n s_waitcnt lgkmcnt(0)')
    def dmaL(st):
        b=st%NS; L=[]
        for i in range(XI):
            pre = f's_add_u32 m0, s30, {b*XS}\n' if i==0 else ''
            post = '\n s_add_u32 s24, s24, 128' if i==XI-1 else ''
            L.append(pre+f' buffer_load_dwordx4 v{1+i}, s[8:11], s24 offen offset:{1024*i} lds'+post)
        for i in range(WI):
            pre = f's_add_u32 m0, s31, {WB+b*WS}\n' if i==0 else ''
            post = '\n s_add_u32 s25, s25, s26' if i==WI-1 else ''
            L.append(pre+f' buffer_load_dwordx4 v{5+i}, s[20:23], s25 offen offset:{1024*i} lds'+post)
        return L
    PER=XI+WI
    for st in range(NS-1): A('\n'.join(dmaL(st)))
    lwn={4:2,2:1,8:3,1:0}[WN]
    A(f'''s_lshr_b32 s33, s14, {lwn}        ; wm
 s_and_b32 s34, s14, {WN-1}        ; wn
 v_and_b32 v16, 31, v0
 v_lshrrev_b32 v17, 5, v0
 v_bfe_u32 v18, v0, 1, 3
 v_xor_b32 v18, v18, v17
 s_mul_i32 s35, s33, {MB*4096}
 v_lshl_add_u32 v16, v16, 7, s35''')
    for kk in range(4): A(f'v_xor_b32 v19, {2*kk}, v18\n v_lshl_add_u32 v{9+kk}, v19, 4, v16')
    A(f'''v_bfe_u32 v16, v0, 2, 2          ; r
 v_lshl_add_u32 v17, v17, 3, v16
 v_mul_u32_u24 v17, {WROW}, v17
 v_and_b32 v18, 1, v0
 v_lshl_add_u32 v17, v18, 3, v17
 v_add_u32 v17, {WB}, v17
 v_bfe_u32 v18, v0, 4, 1
 v_bfe_u32 v19, v0, 1, 1
 v_lshl_add_u32 v18, v18, 1, v19
 s_mul_i32 s35, s34, {4*NB}
 v_add_u32 v18, s35, v18''')
    if BN<128: A('v_lshrrev_b32 v16, 1, v16')
    A('v_lshlrev_b32 v16, 2, v16')
    for nb in range(NB):
        A(f'v_add_u32 v19, {4*nb}, v18\n v_xor_b32 v19, v19, v16\n v_lshl_add_u32 v{13+nb}, v19, 4, v17')
    A(f'''v_lshlrev_b32 v15, 4, v0
 s_mul_i32 s35, s33, {MB}
 s_mul_i32 s35, s35, s28
 s_add_u32 s27, s27, s35
 s_mul_i32 s35, s34, {NB*2048}
 s_add_u32 s27, s27, s35''')
    FB=4*(MB+NB)
    xr=lambda p,mb: 16+p*FB+4*mb
    wr=lambda p,nb: 16+p*FB+4*MB+4*nb
    acc=lambda mb,nb: R('a',16*(mb*NB+nb),16)
    def reads(st,kk,p):
        b=st%NS; L=[]
        for nb in range(NB):
            for t in range(2): L.append(f'ds_read_b64_tr_b16 {R("v",wr(p,nb)+2*t,2)}, v{13+nb} offset:{b*WS+(16*kk+4*t)*WROW}')
        X=[f'ds_read_b128 {R("v",xr(p,mb),4)}, v{9+kk} offset:{b*XS+mb*4096}' for mb in range(MB)]
        return L[:2]+X[:1]+L[2:]+X[1:]
    def mfmas(p, first):
        return [f'{MF} {acc(mb,nb)}, {R("v",wr(p,nb),4)}, {R("v",xr(p,mb),4)}, {"0" if first else acc(mb,nb)}' for mb in range(MB) for nb in range(NB)]
    NK=16
    for st in range(NK+1):
        if st<NK:
            inflight=max(0,min(NS-2, NK-1-st))
            A(f's_waitcnt vmcnt({inflight*PER}) lgkmcnt(0)\n s_barrier')
        else: A('s_waitcnt lgkmcnt(0)')
        D=dmaL(st+NS-1) if st+NS-1<NK else []
        for kk in range(4):
            p=kk&1
            Rd=reads(st,kk,p) if st<NK else []
            if st==0 and kk==0: A('\n'.join(Rd+D)); continue
            if kk: A('s_waitcnt lgkmcnt(0)')
            M=mfmas(p^1, st==0 and kk==1)
            O=Rd
            if st>0 and kk<2:
                h=(len(D)+1)//2; dd=D[:h] if kk==0 else D[h:]
                O=interleave(Rd,dd) if Rd else dd
            A('\n'.join(interleave(M,O)))
            if st==NK: break
    for mb in range(MB):
        for nb in range(NB):
            q=(mb*NB+nb)&1; t=64+16*q; o=96+8*q; a=16*(mb*NB+nb)
            for i in range(16): A(f'v_accvgpr_read_b32 v{t+i}, a{a+i}')
            for i in range(8): A(f'v_cvt_pk_bf16_f32 v{o+i}, v{t+2*i}, v{t+2*i+1}')
            for j in range(2): A(f'v_permlane32_swap_b32 v{o+4*j}, v{o+4*j+2}\n v_permlane32_swap_b32 v{o+4*j+1}, v{o+4*j+3}')
            for j in range(2): A(f'buffer_store_dwordx4 {R("v",o+4*j,4)}, v15, s[4:7], s27 offen offset:{nb*2048+j*1024} sc1')
        if mb<MB-1: A('s_add_u32 s27, s27, s28')
    A('s_branch L_next')

def akv(A):
    A('L_akv:')
    srd(A,44,16,65536); srd(A,48,24,65536); srd(A,52,96,2048)
    A(f'''v_lshlrev_b32 v15, 4, v0
 s_lshl_b32 s33, s14, 13
 s_mov_b32 s40, 0x3f803f80
 s_waitcnt lgkmcnt(0)''')
    for m in range(2):
        for hh in range(2):
            A(f's_add_u32 s34, s33, {4096*hh}\n s_add_u32 m0, s34, {65536*m}')
            for i in range(4): A(f'buffer_load_dwordx4 v15, s[{44+4*m}:{47+4*m}], s34 offen offset:{1024*i} lds')
    A('s_mov_b32 m0, 131072')
    for i in range(2): A(f'buffer_load_dwordx4 v15, s[52:55], 0 offen offset:{1024*i} lds')
    A(f'''v_and_b32 v16, 31, v0
 v_lshrrev_b32 v17, 5, v0
 v_lshlrev_b32 v1, 11, v16
 v_lshl_add_u32 v1, v17, 4, v1      ; X voffset
 s_lshl_b32 s34, s12, 3
 s_add_u32 s34, s34, s14            ; rowblk32
 s_lshl_b32 s24, s34, 16
 v_bfe_u32 v18, v0, 2, 2
 v_lshl_add_u32 v18, v17, 3, v18
 v_lshlrev_b32 v2, 6, v18
 v_bfe_u32 v18, v0, 4, 1
 v_lshl_add_u32 v2, v18, 5, v2
 v_and_b32 v18, 3, v0
 v_lshl_add_u32 v2, v18, 3, v2
 v_add_u32 v3, 65536, v2
 v_lshlrev_b32 v4, 4, v17
 v_add_u32 v4, 131072, v4
 v_mov_b32 v5, 0
 v_mov_b32 v6, 0''')
    for i in range(32): A(f'v_accvgpr_write_b32 a{i}, 0')
    for f in range(16): A(f'buffer_load_dwordx4 {R("v",64+4*f,4)}, v1, s[8:11], s24 offen offset:{32*f}')
    A('s_mov_b32 s29, 0\n s_waitcnt vmcnt(16)\n s_barrier\nL_akvl:\n s_add_u32 s24, s24, 512')
    for f in range(16):
        x=64+4*f; w=16+12*(f&1)
        for t in range(2):
            A(f'ds_read_b64_tr_b16 {R("v",w+2*t,2)}, v2 offset:{1024*f+256*t}\n ds_read_b64_tr_b16 {R("v",w+4+2*t,2)}, v3 offset:{1024*f+256*t}')
        A(f'ds_read_b128 {R("v",w+8,4)}, v4 offset:{32*f}\n s_waitcnt vmcnt(15) lgkmcnt(0)')
        A(f'{MF} a[0:15], {R("v",w,4)}, {R("v",x,4)}, a[0:15]\n {MF} a[16:31], {R("v",x,4)}, {R("v",w+4,4)}, a[16:31]')
        for e in range(4):
            A(f'''v_lshlrev_b32 v40, 16, v{x+e}
 v_lshlrev_b32 v41, 16, v{w+8+e}
 v_and_b32 v42, 0xffff0000, v{x+e}
 v_and_b32 v43, 0xffff0000, v{w+8+e}
 v_mul_f32 v40, v40, v41
 v_mul_f32 v42, v42, v43
 v_cvt_pk_bf16_f32 v{44+e}, v40, v42''')
        for e in range(4): A(f'v_dot2c_f32_bf16 v{5+(e&1)}, s40, v{44+e}')
        A(f'buffer_load_dwordx4 {R("v",x,4)}, v1, s[8:11], s24 offen offset:{32*f}')
    A(f'''v_add_u32 v2, 16384, v2
 v_add_u32 v3, 16384, v3
 v_add_u32 v4, 512, v4
 s_add_u32 s29, s29, 1
 s_cmp_lt_u32 s29, 4
 s_cbranch_scc1 L_akvl
 s_waitcnt vmcnt(0)
 s_mov_b32 s35, {f2u(32**-0.5*LOG2E)}
 s_lshl_b32 s27, s34, 12
 s_add_u32 s27, s27, {KVA}''')
    for i in range(32): A(f'v_accvgpr_read_b32 v{64+i}, a{i}')
    for i in range(16): A(f'v_mul_f32 v{64+i}, s35, v{64+i}')
    for i in range(16): A(f'v_cvt_pk_bf16_f32 v{96+i}, v{64+2*i}, v{65+2*i}')
    for j in range(2): A(f'v_permlane32_swap_b32 v{96+4*j}, v{98+4*j}\n v_permlane32_swap_b32 v{97+4*j}, v{99+4*j}')
    for j in range(4): A(f'buffer_store_dwordx4 {R("v",96+4*j,4)}, v15, s[4:7], s27 offen offset:{1024*j} sc1')
    A(f'''v_add_f32 v5, v5, v6
 v_mov_b32 v6, v5
 v_permlane32_swap_b32 v5, v6
 v_add_f32 v5, v5, v6
 v_cvt_pk_bf16_f32 v5, v5, v5
 v_lshlrev_b32 v5, 16, v5
 v_mul_f32 v5, {f2u(-LOG2E)}, v5
 v_exp_f32 v5, v5
 v_add_f32 v5, 1.0, v5
 v_rcp_f32 v5, v5
 v_cvt_pk_bf16_f32 v5, v5, v5
 v_lshlrev_b32 v8, 16, v5
 v_sub_f32 v9, 1.0, v8
 v_cvt_pk_bf16_f32 v9, v9, v9
 v_lshlrev_b32 v9, 16, v9
 v_lshlrev_b32 v7, 3, v0
 s_lshl_b32 s27, s34, 8
 s_add_u32 s27, s27, {GT}
 s_mov_b32 exec_hi, 0
 buffer_store_dwordx2 v[8:9], v7, s[4:7], s27 offen sc1
 s_mov_b64 exec, -1
 s_lshl_b32 s36, s12, 2
 s_add_u32 s36, s36, {FA}
 s_branch L_next''')

def attnA(A):
    S=[16,32]; P=[48,56]; KB=[64,72]; VB=[80,88]; C=[96,112]
    O=[0,16]; Lr=[32,48]; Q=[64,72]
    A(f'''L_attA:
 v_lshlrev_b32 v2, 2, v0
 v_add_u32 v2, {FA}, v2
 s_lshr_b32 s33, s24, 3
 s_lshl_b32 s33, s33, 7
 s_lshl_b32 s34, s25, 3
 s_add_u32 s33, s33, s34
 s_add_u32 s33, s33, {FAQ-FA-32}
 v_add_u32 v4, s33, v2
 v_cmp_lt_u32 vcc, 7, v0
 v_cndmask_b32 v2, v2, v4, vcc
 v_mov_b32 v3, 1''')
    waitflags(A,'A','0x3ff')
    A(f'''v_lshlrev_b32 v15, 4, v0
 s_lshl_b32 s26, s25, 3
 s_add_u32 s26, s26, s14
 s_lshl_b32 s33, s24, 16
 s_lshl_b32 s34, s26, 12
 s_add_u32 s33, s33, s34
 s_add_u32 s33, s33, {QA}
 s_lshl_b32 s30, s14, 12
 s_mov_b32 s38, 0                   ; pass
 v_and_b32 v4, 31, v0
 v_lshlrev_b32 v4, 3, v4
 s_lshl_b32 s34, s24, 8
 s_add_u32 s34, s34, {GT}
 buffer_load_dword v5, v4, s[4:7], s34 offen sc1''')
    for i in range(4): A(f'buffer_load_dwordx4 {R("a",64+4*i,4)}, v15, s[4:7], s33 offen offset:{1024*i} sc1')
    A('v_mov_b32 v6, 0x3f803f80')
    for i in range(4): A(f'v_accvgpr_write_b32 a{80+i}, v6')
    def dma():
        A(f's_and_b32 s33, s31, 0x1ffff\n s_add_u32 m0, s33, s30\n s_add_u32 s33, s31, s30\n s_add_u32 s33, s33, {KVA}\n s_add_u32 s31, s31, 32768')
        for i in range(4): A(f'buffer_load_dwordx4 v15, s[4:7], s33 offen offset:{1024*i} sc1 lds')
    def start():
        A('s_mov_b32 s31, 0')
        for c in range(3): dma()
        A('s_mov_b32 s29, 0\n v_mov_b32 v1, v15')
    def chunk_top(t):
        A(f''' s_cmp_ge_u32 s31, 0x40000
 s_cbranch_scc1 L_ac1{t}
 s_waitcnt vmcnt(4) lgkmcnt(0)
 s_barrier''')
        dma()
        A(f's_branch L_ac2{t}\nL_ac1{t}:\n s_waitcnt vmcnt(0) lgkmcnt(0)\n s_barrier\nL_ac2{t}:')
    qk=lambda y,kb,c: [f'{MF} {R("v",S[y],16)}, {R("v",KB[kb],4)}, {R("a",Q[y],4)}, {c}', f'{MF} {R("v",S[y],16)}, {R("v",KB[kb]+4,4)}, {R("a",Q[y]+4,4)}, {R("v",S[y],16)}']
    pv=lambda y,vb: [f'{MF} {R("a",O[y],16)}, {R("v",VB[vb],4)}, {R("v",P[y],4)}, {R("a",O[y],16)}', f'{MF} {R("a",Lr[y],16)}, a[80:83], {R("v",P[y],4)}, {R("a",Lr[y],16)}',
                     f'{MF} {R("a",O[y],16)}, {R("v",VB[vb]+4,4)}, {R("v",P[y]+4,4)}, {R("a",O[y],16)}', f'{MF} {R("a",Lr[y],16)}, a[80:83], {R("v",P[y]+4,4)}, {R("a",Lr[y],16)}']
    def mx16(y,d,init):
        L=[f'v_max3_f32 v{d}, v{S[y]}, v{S[y]+1}, '+(f'v{S[y]+1}' if init else f'v{d}')]
        L+=[f'v_max3_f32 v{d}, v{S[y]+2*i}, v{S[y]+2*i+1}, v{d}' for i in range(1,8)]
        return L
    def setC():
        for y in range(2):
            A(f'v_mov_b32 v9, v{7+y}\n v_permlane32_swap_b32 v{7+y}, v9\n v_max_f32 v{7+y}, v{7+y}, v9')
            for i in range(16): A(f'v_sub_f32 v{C[y]+i}, 0, v{7+y}')
    A('L_amain:')
    start()
    for i in range(64): A(f'v_accvgpr_write_b32 a{i}, 0')
    for i in range(8): A(f'v_mov_b32 v{P[1]+i}, 0\n v_mov_b32 v{VB[1]+i}, 0')
    A('s_waitcnt vmcnt(8)\n s_barrier')
    A(f'ds_read_b128 v[64:67], v1\n ds_read_b128 v[68:71], v1 offset:1024\n s_waitcnt lgkmcnt(0)\n s_cmp_lg_u32 s38, 0\n s_cbranch_scc1 L_am1')
    a,b=qk(0,0,'0'),qk(1,0,'0')
    A('\n'.join([a[0],b[0],a[1],b[1]]+mx16(0,7,True)+mx16(1,8,True))); setC()
    A('L_am1:'); A('\n'.join(qk(0,0,R('v',C[0],16))))
    A('L_aloop:'); chunk_top('m')
    A('s_mov_b32 s28, 0\nL_ain:')
    def half(x, M, pre):
        s=S[x]; e=lambda i: f'v_exp_f32 v{s+i}, v{s+i}'; c=lambda i: f'v_cvt_pk_bf16_f32 v{P[x]+i}, v{s+2*i}, v{s+2*i+1}'
        G=[[e(0),e(1),e(2)]+pre,[e(3),e(4),e(5),c(0)],[e(6),e(7),e(8),c(1)],[e(9),e(10),c(2),e(11),c(3)],[e(12),e(13),c(4),e(14)],[e(15),c(5),c(6),c(7)]]
        for m,g in zip(M,G): A(m); A('\n'.join(g))
    for u in range(2):
        pre=['v_add_u32 v10, 4096, v1','v_and_b32 v10, 0x1ffff, v10',
             f'ds_read_b128 {R("v",VB[u],4)}, v1 offset:2048', f'ds_read_b128 {R("v",VB[u]+4,4)}, v1 offset:3072',
             f'ds_read_b128 {R("v",KB[u^1],4)}, v10', f'ds_read_b128 {R("v",KB[u^1]+4,4)}, v10 offset:1024', 'v_mov_b32 v1, v10']
        half(0, qk(1,u,R('v',C[1],16))+pv(1,u^1), pre)
        A('s_waitcnt lgkmcnt(0)')
        half(1, qk(0,u^1,R('v',C[0],16))+pv(0,u), [])
    A('''s_add_u32 s28, s28, 1
 s_cmp_lt_u32 s28, 4
 s_cbranch_scc1 L_ain
 s_add_u32 s29, s29, 1
 s_cmp_lt_u32 s29, 8
 s_cbranch_scc1 L_aloop''')
    A('\n'.join(pv(1,1)))
    A(f'''v_accvgpr_read_b32 v7, a{Lr[0]}
 v_accvgpr_read_b32 v8, a{Lr[1]}
 s_cmp_lg_u32 s38, 0
 s_cbranch_scc1 L_afin
 v_add_f32 v10, v7, v8
 v_cmp_nge_f32 vcc, {f2u(2.0**40)}, v10
 v_mov_b32 v11, {LCTL+16}
 v_mov_b32 v12, 1
 s_cmp_lg_u32 s14, 0
 s_cbranch_scc1 L_af0
 v_mov_b32 v13, 0
 ds_write_b32 v11, v13
 s_waitcnt lgkmcnt(0)
L_af0:
 s_barrier
 s_cbranch_vccz L_af1
 ds_write_b32 v11, v12
 s_waitcnt lgkmcnt(0)
L_af1:
 s_barrier
 ds_read_b32 v12, v11
 s_waitcnt lgkmcnt(0)
 v_readfirstlane_b32 s33, v12
 s_cmp_eq_u32 s33, 0
 s_cbranch_scc1 L_afin
''')
    start()
    A('v_mov_b32 v7, 0xff800000\n v_mov_b32 v8, 0xff800000\nL_axl:'); chunk_top('x')
    A('s_mov_b32 s28, 0\nL_axi:\n ds_read_b128 v[64:67], v1\n ds_read_b128 v[68:71], v1 offset:1024\n v_add_u32 v1, 4096, v1\n v_and_b32 v1, 0x1ffff, v1\n s_waitcnt lgkmcnt(0)')
    A('\n'.join([a[0],b[0],a[1],b[1]]+mx16(0,7,False)+mx16(1,8,False)))
    A('''s_add_u32 s28, s28, 1
 s_cmp_lt_u32 s28, 8
 s_cbranch_scc1 L_axi
 s_add_u32 s29, s29, 1
 s_cmp_lt_u32 s29, 8
 s_cbranch_scc1 L_axl''')
    setC()
    A(f'''s_mov_b32 s38, 1
 s_barrier
 s_branch L_amain
L_afin:
 v_rcp_f32 v7, v7
 v_rcp_f32 v8, v8
 s_mul_i32 s27, s24, {OPS}
 s_lshl_b32 s33, s26, 12
 s_add_u32 s27, s27, s33
 s_add_u32 s27, s27, {OP}
 v_mul_f32 v7, v7, v5
 v_mul_f32 v8, v8, v5''')
    for i in range(32): A(f'v_accvgpr_read_b32 v{16+i}, a{i}')
    for i in range(32): A(f'v_mul_f32 v{16+i}, v{16+i}, v{7+i//16}')
    for i in range(16): A(f'v_cvt_pk_bf16_f32 v{48+i}, v{16+2*i}, v{17+2*i}')
    for j in range(4): A(f'buffer_store_dwordx4 {R("v",48+4*j,4)}, v15, s[4:7], s27 offen offset:{1024*j} sc1')
    A(f'''s_lshl_b32 s36, s24, 7
 s_lshl_b32 s33, s25, 2
 s_add_u32 s36, s36, s33
 s_add_u32 s36, s36, {FO}
 s_branch L_next''')

def attnB(A):
    SC=f2u(128**-0.5*LOG2E)
    A(f'''L_attB:
 s_lshr_b32 s33, s24, 2             ; rb
 s_lshl_b32 s34, s12, 3
 s_add_u32 s34, s34, s33
 s_lshl_b32 s34, s34, 7
 s_add_u32 s34, s34, {FKV}
 v_lshlrev_b32 v4, 2, v0
 v_add_u32 v2, s34, v4
 s_lshl_b32 s34, s33, 2
 s_add_u32 s34, s34, {FA}
 v_mov_b32 v5, s34
 v_cmp_eq_u32 vcc, 18, v0
 v_cndmask_b32 v2, v2, v5, vcc
 s_lshl_b32 s34, s12, 11
 s_add_u32 s34, s34, {FC-32*128}
 v_lshl_add_u32 v5, v0, 7, s34
 s_lshl_b32 s34, s24, 1
 s_add_u32 s34, s34, 2
 v_mov_b32 v6, s34
 v_cmp_lt_u32 vcc, 31, v0
 v_cndmask_b32 v2, v2, v5, vcc
 v_mov_b32 v3, 1
 v_cndmask_b32 v3, v3, v6, vcc
 s_cmp_eq_u32 s33, 0
 s_mov_b32 s40, 0x7000f
 s_cselect_b32 s40, 0x7ffff, s40
 s_mov_b32 s41, 0xffff''')
    waitflags(A,'B','s[40:41]')
    A(f'''s_lshr_b32 s33, s14, 2
 s_lshl_b32 s25, s24, 1
 s_add_u32 s25, s25, s33            ; seg
 s_and_b32 s33, s14, 3
 s_lshl_b32 s26, s12, 2
 s_add_u32 s26, s26, s33            ; head
 s_lshl_b32 s27, s25, 18
 s_lshl_b32 s33, s26, 13
 s_add_u32 s27, s27, s33            ; F offset
 v_lshlrev_b32 v15, 4, v0
 s_lshl_b32 s30, s14, 13''')
    for hh in range(2):
        A(f's_add_u32 s33, s27, {KX+4096*hh}\n s_add_u32 s34, s27, {QX+4096*hh}')
        for i in range(4):
            A(f'buffer_load_dwordx4 {R("v",64+16*hh+4*i,4)}, v15, s[4:7], s33 offen offset:{1024*i} sc1')
            A(f'buffer_load_dwordx4 {R("a",16*hh+4*i,4)}, v15, s[4:7], s34 offen offset:{1024*i} sc1')
    A(f'''v_and_b32 v4, 7, v0
 v_lshrrev_b32 v5, 5, v0
 v_lshlrev_b32 v4, 13, v4
 v_lshl_add_u32 v4, v5, 4, v4
 s_lshl_b32 s33, s25, 16
 s_lshl_b32 s34, s26, 8
 s_add_u32 s33, s33, s34
 s_add_u32 s33, s33, {KM}''')
    for i in range(8): A(f'buffer_load_dwordx4 {R("v",96+4*i,4)}, v4, s[4:7], s33 offen offset:{32*i} sc1')
    for hh in range(2):
        A(f's_add_u32 s33, s27, {VF+4096*hh}\n s_add_u32 m0, s30, {4096*hh}')
        for i in range(4): A(f'buffer_load_dwordx4 v15, s[4:7], s33 offen offset:{1024*i} sc1 lds')
    A(f'''v_bfe_u32 v6, v0, 4, 1
 v_lshlrev_b32 v6, 8, v6
 v_lshl_add_u32 v6, v5, 7, v6
 v_bfe_u32 v7, v0, 1, 1
 v_lshl_add_u32 v6, v7, 6, v6
 v_bfe_u32 v7, v0, 2, 2
 v_lshl_add_u32 v6, v7, 2, v6
 v_and_b32 v7, 1, v0
 v_lshl_add_u32 v6, v7, 1, v6
 s_lshl_b32 s33, s25, 16
 s_lshl_b32 s34, s26, 11
 s_add_u32 s33, s33, s34
 s_add_u32 s33, s33, {VM}''')
    for d in range(4):
        for r in range(4): A(f'buffer_load_ushort v{48+4*d+r}, v6, s[4:7], s33 offen offset:{512*d+16*r} sc1')
    A(f'''v_and_b32 v7, 31, v0
 v_lshlrev_b32 v8, 3, v7
 s_lshl_b32 s33, s25, 8
 s_add_u32 s33, s33, {GT}
 buffer_load_dword v9, v8, s[4:7], s33 offen offset:4 sc1
 v_lshlrev_b32 v8, 2, v5
 v_sub_u32 v7, v7, v8               ; q - 4h
 v_bfe_u32 v10, v0, 4, 1
 v_bfe_u32 v11, v0, 1, 1
 v_lshl_add_u32 v10, v10, 1, v11
 v_lshlrev_b32 v10, 9, v10
 v_bfe_u32 v11, v0, 2, 2
 v_add_u32 v11, v11, v8
 v_lshl_add_u32 v10, v11, 4, v10
 v_and_b32 v11, 1, v0
 v_lshl_add_u32 v10, v11, 3, v10
 v_add_u32 v10, s30, v10
 v_mov_b32 v12, 0xff800000
 s_mov_b32 s35, {SC}
 s_waitcnt vmcnt(33)''')
    for i in range(8): A(f'{MF} v[16:31], {R("v",64+4*i,4)}, {R("a",4*i,4)}, {"0" if i==0 else "v[16:31]"}')
    A('s_waitcnt vmcnt(25)')
    for i in range(8): A(f'{MF} v[32:47], {R("v",96+4*i,4)}, {R("a",4*i,4)}, {"0" if i==0 else "v[32:47]"}')
    A('s_waitcnt vmcnt(17)')
    for d in range(4):
        for j in range(2):
            for t in range(2): A(f'ds_read_b64_tr_b16 {R("a",32+8*d+4*j+2*t,2)}, v10 offset:{2048*d+256*j+128*t}')
    for i in range(16):
        A(f'v_cmp_le_i32 vcc, {8*(i>>2)+(i&3)}, v7\n v_cndmask_b32 v{16+i}, v12, v{16+i}, vcc')
    A('v_max3_f32 v13, v16, v17, v18')
    for i in range(19,35,2): A(f'v_max3_f32 v13, v13, v{i}, v{i+1}')
    A('''v_max_f32 v13, v13, v35
 v_mov_b32 v14, v13
 v_permlane32_swap_b32 v13, v14
 v_max_f32 v13, v13, v14
 v_mul_f32 v13, s35, v13''')
    for i in range(16,36): A(f'v_fma_f32 v{i}, v{i}, s35, -v13')
    for i in range(16,36): A(f'v_exp_f32 v{i}, v{i}')
    for i in range(10): A(f'v_cvt_pk_bf16_f32 v{36+i}, v{16+2*i}, v{17+2*i}')
    A('v_mov_b32 v46, 0\n v_mov_b32 v47, 0\n s_waitcnt vmcnt(0) lgkmcnt(0)')
    for d in range(4):
        b=48+4*d
        A(f'v_lshl_or_b32 v{b}, v{b+1}, 16, v{b}\n v_lshl_or_b32 v{b+1}, v{b+3}, 16, v{b+2}\n v_mov_b32 v{b+2}, 0\n v_mov_b32 v{b+3}, 0')
    M=[]
    for j in range(3):
        for d in range(4):
            a=R('a',32+8*d+4*j,4) if j<2 else R('v',48+4*d,4)
            M.append(f'{MF} {R("v",64+16*d,16)}, {a}, {R("v",36+4*j,4)}, {"0" if j==0 else R("v",64+16*d,16)}')
    V=[f'v_add_f32 v{16+i}, v{16+i}, v{26+i}' for i in range(10)]+[f'v_add_f32 v{16+i}, v{16+i}, v{21+i}' for i in range(5)]
    V+=['v_add_f32 v16, v16, v17','v_add_f32 v18, v18, v19','v_add_f32 v16, v16, v20','v_add_f32 v16, v16, v18','v_mov_b32 v17, v16','s_nop 1\n v_permlane32_swap_b32 v16, v17','v_add_f32 v16, v16, v17','v_rcp_f32 v16, v16','s_nop 0\n v_mul_f32 v16, v16, v9']
    A('\n'.join(interleave(M,V)))
    A(f'''s_mul_i32 s27, s25, {OPS}
 s_lshl_b32 s33, s26, 13
 s_add_u32 s27, s27, s33
 s_add_u32 s27, s27, {OP+65536}
 s_add_u32 s33, s27, 4096''')
    for d in range(4):
        for i in range(16): A(f'v_mul_f32 v{64+16*d+i}, v{64+16*d+i}, v16')
        for i in range(8): A(f'v_cvt_pk_bf16_f32 v{20+8*d+i}, v{64+16*d+2*i}, v{65+16*d+2*i}')
        for j in range(2): A(f'buffer_store_dwordx4 {R("v",20+8*d+4*j,4)}, v15, s[4:7], {"s27" if d<2 else "s33"} offen offset:{2048*(d&1)+1024*j} sc1')
    A(f'''s_lshl_b32 s36, s24, 8
 s_lshl_b32 s33, s12, 2
 s_add_u32 s36, s36, s33
 s_add_u32 s36, s36, {FO+8}
 s_mov_b32 s37, 3
 s_branch L_next''')

def oproj(A, tag, MB, D=5):
    NB=2; RN=D+1; NSL=8
    A(f'''L_op{tag}:
 v_lshrrev_b32 v4, 4, v0
 v_and_b32 v5, 15, v0
 v_add_u32 v4, s24, v4
 v_lshlrev_b32 v4, 7, v4
 v_lshl_add_u32 v2, v5, 2, v4
 v_add_u32 v2, {FO}, v2
 v_mov_b32 v3, 1
 s_mov_b32 s40, 0x03ff03ff
 s_mov_b32 s41, {"0x03ff03ff" if MB==4 else "0"}''')
    srd(A,20,32,0x200000); srd(A,48,80,0x800000); srd(A,44,104,0x400000)
    waitflags(A,'O'+tag,'s[40:41]')
    A(f'''v_lshlrev_b32 v15, 4, v0
 v_lshrrev_b32 v4, 3, v0
 v_and_b32 v5, 7, v0
 v_bfe_u32 v6, v0, 4, 1
 v_lshlrev_b32 v6, 2, v6
 v_xor_b32 v5, v5, v6
 v_lshlrev_b32 v1, 11, v4
 v_lshl_add_u32 v1, v5, 4, v1
 v_add_u32 v2, {16384-1024}, v1
 s_lshl_b32 s30, s14, 14
 v_bfe_u32 v4, v0, 2, 2             ; r
 v_lshrrev_b32 v5, 5, v0
 v_lshl_add_u32 v5, v5, 2, v4
 v_lshlrev_b32 v5, 7, v5
 v_and_b32 v6, 1, v0
 v_lshl_add_u32 v5, v6, 3, v5
 v_add_u32 v5, s30, v5
 v_bfe_u32 v6, v0, 4, 1
 v_bfe_u32 v7, v0, 1, 1
 v_lshl_add_u32 v6, v6, 1, v7
 v_lshrrev_b32 v4, 1, v4
 v_lshl_add_u32 v6, v4, 2, v6
 v_lshl_add_u32 v3, v6, 4, v5
 v_xor_b32 v4, 64, v3
 s_mul_i32 s33, s24, {OPS}
 s_add_u32 s33, s33, {OP}
 s_lshl_b32 s34, s14, 13
 s_add_u32 s34, s34, s33            ; o' A part
 s_lshl_b32 s35, s14, 15
 s_add_u32 s35, s35, s33
 s_add_u32 s35, s35, 65536          ; o' B part
 s_lshl_b32 s26, s14, 18
 s_add_u32 s26, s26, s25
 s_lshl_b32 s27, s14, 20
 s_add_u32 s27, s27, s25
 s_waitcnt lgkmcnt(0)''')
    for mb in range(1,MB): A(f'v_add_u32 v{7+mb}, {OPS*mb}, v15')
    ov=lambda mb: 'v15' if mb==0 else f'v{7+mb}'
    xr=lambda s,mb: 32+(s%RN)*4*MB+4*mb
    wr=lambda s,nb: 16+(s&1)*8+4*nb
    assert 32+RN*4*MB<=128
    NT=40; PER=NB+MB
    def loads(s):
        a = s<8
        w,so,xo = ('s[20:23]','s26','s34') if a else ('s[48:51]','s27','s35')
        L=[f's_add_u32 m0, s30, {(s%NSL)*2048}\n buffer_load_dwordx4 v1, {w}, {so} offen lds', f'buffer_load_dwordx4 v2, {w}, {so} offen offset:1024 lds\n s_add_u32 {so}, {so}, 32768']
        q=s&3
        for mb in range(MB):
            L.append(f'buffer_load_dwordx4 {R("v",xr(s,mb),4)}, {ov(mb)}, s[4:7], {xo} offen offset:{1024*q} sc1' + (f'\n s_add_u32 {xo}, {xo}, 4096' if q==3 and mb==MB-1 else ''))
        return L
    def trs(s): return [f'ds_read_b64_tr_b16 {R("v",wr(s,nb)+2*t,2)}, v{3+nb} offset:{(s%NSL)*2048+1024*t}' for nb in range(NB) for t in range(2)]
    for s in range(D): A('\n'.join(loads(s)))
    A(f's_waitcnt vmcnt({PER*(D-1)+MB})'); A('\n'.join(trs(0)))
    for s in range(NT):
        M=[f'{MF} {R("a",16*(mb*NB+nb),16)}, {R("v",wr(s,nb),4)}, {R("v",xr(s,mb),4)}, {"0" if s==0 else R("a",16*(mb*NB+nb),16)}' for mb in range(MB) for nb in range(NB)]
        infl=max(0,min(D-2,NT-2-s))
        A(f's_waitcnt vmcnt({PER*infl+(MB if s+1<NT else 0)}) lgkmcnt(0)')
        O=(trs(s+1) if s+1<NT else [])+(loads(s+D) if s+D<NT else [])
        A('\n'.join(interleave(M,O)))
    PS=16*1056
    A(f'''s_mul_i32 s33, s14, {PS}
 v_add_u32 v1, s33, v15
 v_and_b32 v4, 7, v0
 v_mul_u32_u24 v2, 1056, v4
 v_lshrrev_b32 v5, 3, v0
 s_lshl_b32 s33, s14, 3
 v_add_u32 v5, s33, v5
 v_and_b32 v6, 31, v5
 v_lshl_add_u32 v2, v6, 4, v2
 s_lshr_b32 s33, s14, 2
 s_mul_i32 s33, s33, {8*1056}
 v_add_u32 v2, s33, v2
 v_add_u32 v3, {4*PS}, v2
 v_lshlrev_b32 v5, 11, v5
 v_lshl_add_u32 v5, v4, 4, v5
 s_lshl_b32 s27, s24, 16
 s_add_u32 s27, s27, s25''')
    for rd in range(MB//2):
        A('s_barrier')
        for b in range(4):
            for i in range(4): A(f'ds_write_b128 v1, {R("a",64*rd+16*b+4*i,4)} offset:{(4*b+i)*1056}')
        A('s_waitcnt lgkmcnt(0)\n s_barrier')
        for p in range(8):
            for h in range(2): A(f'ds_read_b128 {R("v",16+8*p+4*h,4)}, v{2+p//4} offset:{(p&3)*PS+512*h}')
        for p in range(1,8):
            A(f's_waitcnt lgkmcnt({14-2*p})')
            for i in range(8): A(f'v_add_f32 v{16+i}, v{16+i}, v{16+8*p+i}')
        for i in range(4): A(f'v_cvt_pk_bf16_f32 v{80+4*rd+i}, v{16+2*i}, v{17+2*i}')
        A(f'buffer_store_dwordx4 {R("v",80+4*rd,4)}, v5, s[44:47], s27 offen\n s_add_u32 s27, s27, {64*2048}')
    A('s_mov_b32 s37, 0\n s_branch L_next')
```

```python
from asmlib import *
import struct
XP=0x5000000; MR=0x080000; SP=0x100000; VP=0x180000
KM=0x400000; VM=0x800000; KX=0x1000000; VF=0x2000000; QX=0x3000000
H3=0x210000; FL=0x220000; FC=FL+0x8000
TS=0x4000000
RGW=3584; RT=14336; LFLAG=24576; RINV=LFLAG+128; SELA=25600; VXB=32768; RTS=98304
SCALE_B = 128**-0.5 * 1.4426950408889634
def f2u(f): return struct.unpack('<I', struct.pack('<f', f))[0]
def wfrag(f): return f'a[{8*f}:{8*f+7}]' if f < 16 else f'v[{64+8*(f-16)}:{64+8*(f-16)+7}]'
def wreg(f, i): return f'a{8*f+i}' if f < 16 else f'v{64+8*(f-16)+i}'

def gen_chain(A, opt):
    full = opt.get('full', False)
    XIT = 'L_cend' if full else 'L_end'
    guard = opt.get('guard', True)
    rt = opt.get('rt', False)
    dev = bool(rt)
    MT = 's_memrealtime' if opt.get('real', True) else 's_memtime'
    LS = opt.get('ls', '')
    CNT = {'h':88,'x':89,'r':90,'v':89,'s':90}
    def G(lbl):
        if dev and lbl in CNT: A(f's_add_u32 s{CNT[lbl]}, s{CNT[lbl]}, 1')
        if guard: A(f's_add_u32 s60, s60, 1\n s_cmp_gt_u32 s60, 0x400000\n s_cbranch_scc1 L_end')
    def stamp(k):
        if dev: A(f'{MT} s[{64+2*k}:{65+2*k}]')
    def lgkm(n): A(f's_waitcnt lgkmcnt({n})')
    def flush_ts(n, base, t):
        if not dev: return
        A(f's_waitcnt lgkmcnt(0)\n s_lshl_b32 s61, s14, 11\n s_lshl_b32 s80, s15, 5\n s_add_u32 s61, s61, s80\n s_add_u32 s61, s61, {RTS}\n v_mov_b32 v{base-1}, s61')
        for k in range(n): A(f'v_mov_b32 v{base}, s{64+2*k}\n ds_write_b32 v{base-1}, v{base} offset:{4*k}')
        A(f's_lshl_b32 s89, s89, 8\n s_lshl_b32 s90, s90, 16\n s_add_u32 s88, s88, s89\n s_add_u32 s88, s88, s90\n v_mov_b32 v{base}, s88\n ds_write_b32 v{base-1}, v{base} offset:28\n s_mov_b32 s88, 0\n s_mov_b32 s89, 0\n s_mov_b32 s90, 0')
        A(f's_cmp_eq_u32 s15, 62\n s_cbranch_scc0 L_ts2{t}')
        A(f's_lshl_b32 s61, s12, 4\n s_add_u32 s61, s61, s13\n s_lshl_b32 s61, s61, 3\n s_add_u32 s61, s61, s14\n s_lshl_b32 s61, s61, 11\n s_add_u32 s61, s61, {TS}')
        A(f's_lshl_b32 s80, s14, 11\n s_add_u32 s80, s80, {RTS}\n v_lshlrev_b32 v{base-2}, 2, v0\n v_add_u32 v{base-1}, s80, v{base-2}')
        for k in range(8): A(f'ds_read_b32 v{base}, v{base-1} offset:{256*k}\n s_waitcnt lgkmcnt(0)\n buffer_store_dword v{base}, v{base-2}, s[4:7], s61 offen offset:{256*k}\n s_waitcnt vmcnt(0)')
        A(f'L_ts2{t}:')
    A(f'''
L_chain:
 s_mov_b32 s88, 0
 s_mov_b32 s89, 0
 s_mov_b32 s90, 0
 s_mov_b32 s60, 0
 s_mov_b32 s15, 0
 s_lshl_b32 s20, s12, 14         ; g*16K
 v_and_b32 v56, 15, v0           ; n
 v_lshrrev_b32 v57, 4, v0        ; g
 v_mov_b32 v3, 0x4444
 v_mov_b32 v58, 0xeeee
 v_cmp_lt_u32 vcc, 7, v56
 v_cndmask_b32 v3, v3, v58, vcc
 s_and_b32 s21, s14, 3
 s_mov_b32 s40, 0x3f80
 s_mov_b32 s41, 0x3f800000
 s_mov_b32 s42, 0x05040100
 s_mov_b32 s43, 0x07060302
 s_mov_b32 s44, -2
 v_mov_b32 v59, 0
 v_mov_b32 v63, 0
 s_mov_b32 s51, 0
 s_cmp_ge_u32 s14, 4
 s_cbranch_scc1 L_T
''')
    A(f'''
 s_load_dwordx2 s[8:9], s[0:1], 56
 s_load_dwordx2 s[24:25], s[0:1], 64
 s_load_dwordx2 s[28:29], s[0:1], 72
 s_load_dwordx2 s[32:33], s[0:1], 48
 s_mov_b32 s10, 0x800000
 s_mov_b32 s11, 0x20000
 s_mov_b32 s26, 0x800000
 s_mov_b32 s27, 0x20000
 s_mov_b32 s30, 0x800000
 s_mov_b32 s31, 0x20000
 s_mov_b32 s34, 0x4000
 s_mov_b32 s35, 0x20000
 s_lshl_b32 s23, s12, 4
 s_add_u32 s23, s23, s13
 s_lshl_b32 s23, s23, 6
 s_lshr_b32 s18, s12, 1          ; XCD
 s_and_b32 s19, s12, 1           ; a
 v_mov_b32 v8, v56
 v_mov_b32 v9, v57
 v_lshlrev_b32 v7, 4, v0         ; lane*16
 s_lshl_b32 s22, s13, 10
 s_and_b32 s36, s22, 0x2000
 s_add_u32 s22, s22, s36
 s_add_u32 s22, s22, {XP}
 s_lshl_b32 s36, s12, 15
 s_add_u32 s36, s36, s22
 s_lshl_b32 s37, s14, 8
 s_add_u32 s36, s36, s37
 v_lshl_add_u32 v62, v8, 4, s36
 s_lshl_b32 s36, s19, 9
 s_lshl_b32 s37, s14, 7
 s_add_u32 s37, s36, s37
 s_add_u32 s36, s37, s22
 v_lshrrev_b32 v12, 3, v0
 v_lshlrev_b32 v1, 15, v12
 v_and_b32 v12, 7, v0
 v_lshl_add_u32 v1, v12, 4, v1
 v_add_u32 v1, s36, v1
 v_add_u32 v13, 0x200000, v1
 v_cmp_eq_u32 vcc, s18, v9
 v_cndmask_b32 v1, v1, v13, vcc
 s_lshl_b32 s38, s18, 14
 s_add_u32 s38, s38, {MR}
 s_lshl_b32 s36, s13, 10
 s_add_u32 s36, s36, s37
 s_add_u32 s36, s36, s38
 v_lshlrev_b32 v2, 2, v12
 v_lshl_add_u32 v2, v9, 5, v2
 v_add_u32 v2, s36, v2
 s_lshl_b32 s36, s14, 12
 s_add_u32 s48, s36, s38
 ; row u = 2g + ((n>>2)&1)
 v_bfe_u32 v12, v0, 2, 1
 v_lshl_add_u32 v12, v9, 1, v12
 v_lshlrev_b32 v61, 4, v12
 v_add_u32 v61, {RINV}, v61
 v_mul_u32_u24 v6, 320, v12
 v_and_b32 v13, 3, v0
 v_lshl_add_u32 v6, v13, 4, v6
 v_bfe_u32 v14, v0, 3, 1
 v_lshl_add_u32 v6, v14, 3, v6
 s_lshl_b32 s36, s14, 6
 s_add_u32 s36, s36, {RT}
 v_add_u32 v6, s36, v6
 v_lshlrev_b32 v11, 11, v12
 v_lshl_add_u32 v11, v13, 3, v11
 s_lshl_b32 s36, s13, 7
 s_lshr_b32 s38, s37, 8
 s_lshl_b32 s38, s38, 5
 s_add_u32 s36, s36, s38
 s_and_b32 s38, s14, 1
 s_lshl_b32 s38, s38, 2
 s_add_u32 s36, s36, s38
 v_add_u32 v11, s36, v11
 v_and_b32 v12, 1, v9
 v_mul_u32_u24 v4, 1664, v12
 v_lshl_add_u32 v4, v8, 3, v4
 s_mul_i32 s36, s14, {RGW}
 v_add_u32 v4, s36, v4
 v_lshrrev_b32 v12, 1, v9
 v_lshl_add_u32 v5, v12, 2, v4
 v_add_u32 v5, 288, v5
 v_mul_u32_u24 v12, 144, v12
 v_add_u32 v4, v4, v12
 v_lshlrev_b32 v10, 16, v9
 v_lshl_add_u32 v10, v8, 2, v10
 v_add_u32 v10, s23, v10
 s_lshl_b32 s49, s12, 2
 s_add_u32 s49, s49, s14
 s_lshl_b32 s49, s49, 13
 s_add_u32 s49, s49, {VF}
 s_lshl_b32 s50, s14, 13
 s_add_u32 s50, s50, {VXB}
 v_mov_b32 v20, -1
 v_mov_b32 v21, -1
 v_mov_b32 v22, -1
 v_mov_b32 v23, -1
 v_lshl_add_u32 v12, v9, 18, v62''')
    for k in range(4):
        A(f's_mov_b32 s36, {(k&1)*8192+(k>>1)*0x200000}\n buffer_store_dwordx4 v[20:23], v12, s[4:7], s36 offen {"sc1" if k<2 else LS}')
    for sl in range(4):
        A(f's_mov_b32 s36, {sl<<17}\n buffer_store_dword v20, v2, s[4:7], s36 offen {LS}')
    A(f'''
 s_mov_b32 s52, 0x00ff00ff
 s_mov_b32 s53, 0x00ff00ff
 s_mov_b32 s54, 0
 s_mov_b32 s55, 0x00ff00ff
 s_mov_b32 s58, 0x55555555
 s_cmp_eq_u32 s14, 0
 s_cselect_b32 s58, 0xff00ff00, s58
 s_cbranch_scc1 L_G0i
 s_cmp_eq_u32 s14, 1
 s_cbranch_scc1 L_G1i
 s_lshl_b32 s36, s12, 11
 s_lshl_b32 s37, s13, 2
 s_add_u32 s36, s36, s37
 s_add_u32 s36, s36, {H3}
 v_lshlrev_b32 v59, 7, v0
 v_add_u32 v59, s36, v59
 ; selection matrix for the partial sum
 v_mov_b32 v16, s40
 v_mov_b32 v17, s41''')
    for r in range(4):
        A(f'v_cmp_eq_u32 vcc, {4*r}, v8\n v_cndmask_b32 v{12+r}, 0, v16, vcc\n v_cmp_eq_u32 vcc, {4*r+1}, v8\n v_cndmask_b32 v{12+r}, v{12+r}, v17, vcc')
    A(f'''ds_write_b128 v7, v[12:15] offset:{SELA}
 s_lshl_b32 s51, s23, 1
 s_add_u32 s51, s51, {FC}
 s_lshl_b32 s36, s23, 5
 s_add_u32 s36, s36, {VF}
 v_lshl_add_u32 v58, v8, 7, s36
 v_subrev_u32 v57, {VF-KX}, v58
 v_cmp_lt_u32 vcc, 15, v0
 v_cndmask_b32 v58, v58, v57, vcc
 s_branch L_Gw
L_G1i:
 v_bfe_u32 v12, v0, 1, 2         ; rho&3
 v_bfe_u32 v13, v0, 4, 1         ; rho>>3
 v_lshl_add_u32 v12, v13, 2, v12 ; key
 v_mul_u32_u24 v63, 416, v12
 v_lshrrev_b32 v12, 5, v0        ; g'
 v_lshl_add_u32 v63, v12, 6, v63
 v_and_b32 v12, 1, v0
 v_lshl_add_u32 v63, v12, 5, v63
 v_bfe_u32 v12, v0, 3, 1         ; half
 v_lshl_add_u32 v63, v12, 3, v63
 v_add_u32 v63, 288, v63
 v_add_u32 v58, 16, v63
 v_lshlrev_b32 v12, 3, v0
 s_lshl_b32 s36, s13, 9
 s_add_u32 s36, s36, s20
 s_add_u32 s36, s36, {VP}
 v_add_u32 v56, s36, v12
 s_lshl_b32 s36, s23, 3
 s_add_u32 s36, s36, {VM}
 v_add_u32 v57, s36, v12
''')
    for sl in range(4):
        A(f's_mov_b32 s36, {sl<<17}\n buffer_store_dwordx2 v[20:21], v56, s[4:7], s36 offen {LS}')
    A(f'''
 s_branch L_Gw
L_G0i:
 v_and_b32 v12, 7, v8
 v_bfe_u32 v13, v8, 1, 1
 v_bfe_u32 v14, v8, 2, 1
 v_and_b32 v15, 1, v8
 v_lshl_add_u32 v15, v13, 2, v15   ; 4r1 + r0
 v_lshl_add_u32 v16, v14, 1, v15
 v_cmp_lt_u32 vcc, 7, v8
 v_cndmask_b32 v16, v12, v16, vcc
 v_mul_u32_u24 v63, 416, v16
 v_lshrrev_b32 v13, 3, v8
 v_mul_u32_u24 v17, 144, v13
 v_add_u32 v63, v63, v17
 v_lshl_add_u32 v63, v9, 5, v63
 v_lshlrev_b32 v17, 4, v9
 v_add_u32 v17, s23, v17
 v_lshl_add_u32 v57, v16, 13, v17
 v_add_u32 v57, {KM}, v57          ; k_m copy
 ; key(b=0) = 16r2 + 4r1 + 2r3 + r0
 v_lshl_add_u32 v15, v14, 4, v15
 v_lshl_add_u32 v15, v13, 1, v15
 v_lshlrev_b32 v17, 9, v9
 v_lshl_add_u32 v58, v15, 4, v17
 s_lshl_b32 s36, s23, 5
 s_add_u32 s36, s36, {KX}
 v_add_u32 v58, s36, v58
 s_lshl_b32 s36, s13, 10
 s_add_u32 s36, s36, s20
 s_add_u32 s36, s36, {SP}
 v_and_b32 v13, 1, v9
 v_lshrrev_b32 v14, 1, v9
 v_lshlrev_b32 v56, 8, v13
 v_lshl_add_u32 v56, v14, 7, v56
 v_lshl_add_u32 v56, v12, 4, v56
 v_add_u32 v56, s36, v56
 v_lshlrev_b32 v59, 6, v13
 v_lshl_add_u32 v59, v12, 3, v59
 v_add_u32 v59, s36, v59
''')
    for sl in range(4):
        A(f's_add_u32 s37, s36, {sl<<17}\n buffer_store_dwordx4 v[20:23], v7, s[4:7], s37 offen {LS}')
    A(f'''
L_Gw:
 s_waitcnt vmcnt(0) lgkmcnt(0)
 s_barrier
 s_lshl_b32 s36, s14, 21         ; 256*w rows * 8192
''')
    srd = ['s[8:11]','s[24:27]','s[28:31]']
    blk_of = lambda t, b: [[0,2],[1,3],[4,5]][t][b]
    groups = [(j,t) for j in range(4) for t in range(3)]
    def issue(j,t):
        for H in range(2):
            for e in range(8):
                f = j*6 + blk_of(t, e&1)
                A(f's_add_u32 s37, s36, {(64*j+32*H+e)*8192}\n buffer_load_dword {wreg(f, H*4+e//2)}, v10, {srd[t]}, s37 offen')
    def fix(j,t):
        f0 = j*6+blk_of(t,0); f1 = j*6+blk_of(t,1)
        for p in range(8):
            a, b = wreg(f0,p), wreg(f1,p)
            ra, rb = a, b
            if a[0]=='a': A(f'v_accvgpr_read_b32 v12, {a}'); ra='v12'
            if b[0]=='a': A(f'v_accvgpr_read_b32 v13, {b}'); rb='v13'
            A(f'v_perm_b32 v14, {rb}, {ra}, s42\n v_perm_b32 v15, {rb}, {ra}, s43')
            A(f'v_accvgpr_write_b32 {a}, v14' if a[0]=='a' else f'v_mov_b32 {a}, v14')
            A(f'v_accvgpr_write_b32 {b}, v15' if b[0]=='a' else f'v_mov_b32 {b}, v15')
    A('buffer_load_dword v60, v11, s[32:35], 0 offen')
    for gi in range(3): issue(*groups[gi])
    for gi in range(12):
        rem = min(3, 12-gi) - 1
        A(f's_waitcnt vmcnt({16*rem})')
        if gi+3 < 12: issue(*groups[gi+3])
        fix(*groups[gi])
    for r in range(24,48): A(f'v_mov_b32 v{r}, 0')
    def vdma(so, lo=0, hi=8):
        if opt.get('novx'): return
        for i in range(lo,hi):
            if i==0: A('s_mov_b32 m0, s50')
            if i==4: A(f's_add_u32 {so}, {so}, 4096\n s_add_u32 m0, s50, 4096')
            A(f'buffer_load_dwordx4 v7, s[4:7], {so} offen offset:{1024*(i&3)} sc1 lds')
    DW = opt.get('dw', 0)
    A(f'''
 v_min_u32 v60, s44, v60
 s_mov_b32 s45, 0
 s_mov_b32 s46, s48
 s_waitcnt vmcnt(0)''')
    tlog(A,'2001',0,opt.get('tl'))
    A(f'''s_barrier
 s_barrier
 v_mov_b32 v12, {LFLAG}
 ds_read_b32 v12, v12 offset:32
 s_add_u32 s36, s49, {1<<18}''')
    vdma('s36')
    A(f'''s_waitcnt lgkmcnt(0)
 v_readfirstlane_b32 s59, v12
 s_setprio 2
 s_cmp_lg_u32 s14, 0
 s_cbranch_scc1 L_Gpub
 buffer_load_dwordx4 v[48:51], v58, s[4:7], 0 offen sc1
 buffer_load_dwordx4 v[52:55], v58, s[4:7], 0 offen offset:128 sc1
 s_branch L_Gpub
L_Gloop:
 ds_read2st64_b64 v[8:11], v6 offset0:0 offset1:5
 ds_read_b128 v[16:19], v61
 ds_read2st64_b64 v[12:15], v6 offset0:10 offset1:15''')
    stamp(0)
    lgkm(1)
    A('''v_mul_f32 v8, v8, v16
 v_mul_f32 v9, v9, v16
 v_fmac_f32 v8, v10, v17
 v_fmac_f32 v9, v11, v17''')
    lgkm(0)
    A(f'''v_fmac_f32 v8, v12, v18
 v_fmac_f32 v9, v13, v18
 v_fmac_f32 v8, v14, v19
 v_fmac_f32 v9, v15, v19
 v_cvt_pk_bf16_f32 v8, v8, v9
 v_min_u32 v8, s44, v8
 v_permlane16_swap_b32 v8, v9
 v_permlane32_swap_b32 v8, v10
 v_permlane32_swap_b32 v9, v11
 s_mov_b64 exec, 0xffff
 buffer_store_dwordx4 v[8:11], v62, s[4:7], s47 offen sc1
 buffer_store_dwordx4 v[8:11], v62, s[4:7], s39 offen {LS}
 s_mov_b64 exec, -1''')
    stamp(1)
    vdma('s38', DW, 8)
    A(f'ds_read_b128 v[20:23], v7 offset:{SELA}')
    if not opt.get('zearly'):
        for r in range(24,48): A(f'v_mov_b32 v{r}, 0')
    for k in range(opt.get('gdl',0)): A('ds_read_b32 v14, v6\n s_waitcnt lgkmcnt(0)')
    if opt.get('pace',1): A(f's_waitcnt vmcnt({8-DW})')
    A('s_waitcnt lgkmcnt(0)')
    stamp(2)
    A('L_Gx:\n buffer_load_dwordx4 v[16:19], v1, s[4:7], s47 offen sc1\n s_mov_b64 exec, -1')
    G('x')
    A(f'''s_waitcnt vmcnt(0)
 v_mfma_f32_16x16x32_bf16 v[8:11], v[20:23], v[16:19], 0
 v_cmp_eq_u32 vcc, -1, v16
 s_cbranch_vccnz L_Gxr
 v_add_f32_dpp v8, v8, v8 row_ror:8 row_mask:0xf bank_mask:0xf
 v_add_f32_dpp v9, v9, v9 row_ror:8 row_mask:0xf bank_mask:0xf
 v_cvt_pk_bf16_f32 v60, v8, v9
 v_min_u32 v60, s44, v60
L_Gpub:
 buffer_store_dword v60, v2, s[4:7], s45 offen {LS}''')
    acc = lambda b: f'v[{24+4*b}:{27+4*b}]'
    gl = lambda j: f'buffer_load_dwordx4 v[{8+4*j}:{11+4*j}], v7, s[4:7], s46 offen offset:{1024*j} sc1'
    smf = lambda j, b: f'v_smfmac_f32_16x16x64_bf16 {acc(b)}, v[{8+4*j}:{11+4*j}], {wfrag(6*j+b)}, v3'
    if opt.get('w2'): A('s_waitcnt vmcnt(0)')
    for k in range(opt.get('wdl',0)): A('ds_read_b32 v14, v6\n s_waitcnt lgkmcnt(0)')
    for j in range(4): A(gl(j))
    stamp(3)
    A('s_mov_b32 s56, 15')
    def blk(k, r, fast):
        nx = lambda rr: 'L_Gqd' if rr == 0 else f'L_R{(k+1)&3}{rr}'
        if not fast:
            A(f'L_R{k}{r}:')
            if r < 4: A(f's_bitcmp1_b32 s56, {k}\n s_cbranch_scc0 {nx(r)}')
        A(f's_waitcnt vmcnt({r-1})\n v_cmp_eq_u32 vcc, -1, v{8+4*k}\n s_cbranch_vccnz L_F{k}{r}')
        for b in range(4): A(smf(k,b))
        if r > 1: A(f's_bitset0_b32 s56, {k}')
        if not fast:
            A(f's_branch {nx(r-1)}\nL_F{k}{r}:\n s_mov_b64 exec, vcc\n {gl(k)}\n s_mov_b64 exec, -1')
            G('r')
            A(f's_branch {f"L_R{k}1" if r == 1 else nx(r)}')
    for k in range(4): blk(k, 4-k, True)
    A('L_Gqd:')
    stamp(4)
    vs = [smf(j,b) for j in range(4) for b in (4,5)]
    VE = opt.get('ve', 2)
    A('\n'.join(vs[:VE]))
    for i in range(4): A(f'v_permlane32_swap_b32 v{24+i}, v{28+i}')
    for i in (0,2,1,3): A(f'v_add_f32 v{24+2*i}, v{24+i}, v{28+i}')
    for i in range(4): A(f'v_permlane32_swap_b32 v{32+i}, v{36+i}')
    for i in range(2): A(f'v_add_f32 v{25+2*i}, v{32+i}, v{36+i}')
    A('ds_write2_b64 v4, v[24:25], v[26:27] offset0:0 offset1:52')
    for i in range(2,4): A(f'v_add_f32 v{25+2*i}, v{32+i}, v{36+i}')
    A('ds_write2_b64 v4, v[28:29], v[30:31] offset0:104 offset1:156')
    VL = opt.get('vl', 8)
    A('\n'.join(vs[VE:VL]))
    A(f'''s_waitcnt lgkmcnt(0)
 s_barrier                       ; barrier G
 s_cmp_lg_u32 s14, 0
 s_cbranch_scc1 L_G123''')
    def vfold(a,b,m=True):
        if m: A('\n'.join(vs[VL:]))
        for i in range(4): A(f'v_permlane32_swap_b32 v{40+i}, v{44+i}')
        for i in range(4): A(f'v_add_f32 v{40+i}, v{40+i}, v{44+i}\n ds_write_b32 v5, v{40+i} offset:{416*i}')
        A(f'v_mov_b32 v{a}, {LFLAG+16}\n v_mov_b32 v{b}, 1\n s_mov_b64 exec, 1\n ds_add_u32 v{a}, v{b}\n s_mov_b64 exec, -1')
    for w in (2,3,0,1):
        if w==0: A('\n'.join(vs[VL:]))
        A(f'ds_read_b128 v[{8+8*w}:{11+8*w}], v63 offset:{RGW*w}\n ds_read_b128 v[{12+8*w}:{15+8*w}], v63 offset:{RGW*w+16}')
    stamp(5)
    vfold(44,45,False)
    lgkm(9)
    for i in range(8): A(f'v_add_f32 v{24+i}, v{24+i}, v{32+i}')
    lgkm(5)
    for i in range(8): A(f'v_add_f32 v{8+i}, v{8+i}, v{16+i}')
    for i in range(4): A(f'v_add_f32 v{8+2*i}, v{8+2*i}, v{24+2*i}\n v_add_f32 v{9+2*i}, v{9+2*i}, v{25+2*i}\n v_cvt_pk_bf16_f32 v{40+i}, v{8+2*i}, v{9+2*i}')
    A(f'''v_mfma_f32_16x16x32_bf16 v[8:11], v[48:51], v[40:43], 0
 v_mfma_f32_16x16x32_bf16 v[12:15], v[52:55], v[40:43], 0
 v_mfma_f32_16x16x32_bf16 v[44:47], v[40:43], v[40:43], 0
 s_mov_b64 exec, s[52:53]
 v_cvt_pk_bf16_f32 v16, v8, v9
 v_cvt_pk_bf16_f32 v17, v10, v11
 v_min_u32 v16, s44, v16
 v_cvt_pk_bf16_f32 v18, v12, v13
 v_cvt_pk_bf16_f32 v19, v14, v15
 buffer_store_dwordx4 v[16:19], v56, s[4:7], s45 offen {LS}
 s_mov_b64 exec, s[54:55]
 v_cvt_pk_bf16_f32 v20, v44, v45
 v_cvt_pk_bf16_f32 v21, v46, v47
 v_min_u32 v20, s44, v20
 buffer_store_dwordx2 v[20:21], v59, s[4:7], s45 offen offset:512 {LS}
 s_mov_b64 exec, -1''')
    stamp(6)
    A(f'''s_branch L_Gtail
L_G123:''')
    stamp(5)
    HINT=f'''s_cmp_lg_u32 s14, 2
 s_cbranch_scc1 L_G13
 s_add_u32 s36, s15, 1
 v_mov_b32 v60, s36
 {'s_waitcnt lgkmcnt(0)' if opt.get('hp',0)==2 else ''}
 s_mov_b64 exec, 0xffff
 buffer_store_dword v60, v59, s[4:7], 0 offen {LS}
 s_mov_b64 exec, -1
L_G13:'''
    if opt.get('hp',0)==0: A(HINT)
    vfold(44,45)
    if opt.get('hp',0)>=1: A(HINT)
    A(f'''s_cmp_lg_u32 s14, 1
 s_cbranch_scc1 L_Gtail
 s_lshl_b32 s36, s15, 2
 s_add_u32 s36, s36, 4
L_Gv:
 ds_read_b32 v45, v44
 ds_read2st64_b64 v[8:11], v63 offset0:0 offset1:7
 ds_read2st64_b64 v[12:15], v58 offset0:0 offset1:7
 ds_read2st64_b64 v[16:19], v63 offset0:14 offset1:21
 ds_read2st64_b64 v[20:23], v58 offset0:14 offset1:21''')
    G('z')
    lgkm(2)
    A('''v_cmp_ne_u32 vcc, s36, v45
 v_add_f32 v8, v8, v10
 v_add_f32 v9, v9, v11
 v_add_f32 v12, v12, v14
 v_add_f32 v13, v13, v15''')
    lgkm(0)
    A(f'''s_cbranch_vccnz L_Gv
 v_add_f32 v16, v16, v18
 v_add_f32 v17, v17, v19
 v_add_f32 v20, v20, v22
 v_add_f32 v21, v21, v23
 v_add_f32 v8, v8, v16
 v_add_f32 v9, v9, v17
 v_add_f32 v12, v12, v20
 v_add_f32 v13, v13, v21
 v_cvt_pk_bf16_f32 v40, v8, v9
 v_cvt_pk_bf16_f32 v41, v12, v13
 v_min_u32 v40, s44, v40
 buffer_store_dwordx2 v[40:41], v56, s[4:7], s45 offen {LS}''')
    stamp(6)
    A(f'''v_mov_b32_dpp v42, v40 quad_perm:[1,1,3,3] row_mask:0xf bank_mask:0xf
 v_mov_b32_dpp v43, v41 quad_perm:[1,1,3,3] row_mask:0xf bank_mask:0xf
L_Gtail:
 s_setprio 0
 s_lshl_b32 s57, s15, 16
 s_cmp_eq_u32 s15, 63
 s_cbranch_scc1 L_Gend''')
    flush_ts(7, 22, 'g')
    if opt.get('tl'):
        A('s_and_b32 s94, s15, 3\n s_cbranch_scc1 L_tlx\n s_add_u32 s94, s15, 3000')
        tlog(A,'s94',0,True)
        A('L_tlx:')
    def copies(t):
        A(f'''s_mov_b32 exec_lo, s58
 s_mov_b32 exec_hi, s58
 buffer_store_dwordx4 v[40:43], v57, s[4:7], s57 offen sc1''')
    A(f'''s_xor_b32 s37, s45, {2<<17}
 s_add_u32 s15, s15, 1
 s_and_b32 s45, s15, 3
 s_lshl_b32 s47, s45, 18
 s_add_u32 s47, s47, s59
 s_add_u32 s39, s47, 0x200000
 s_lshl_b32 s45, s45, 17
 s_add_u32 s46, s45, s48
 s_xor_b32 s22, s47, {2<<18}
 s_xor_b32 s19, s39, {2<<18}
 s_lshl_b32 s62, s15, 18
 s_add_u32 s38, s15, 1
 s_min_u32 s38, s38, 63
 s_lshl_b32 s38, s38, 18
 s_mov_b32 s18, s38
 s_add_u32 s38, s38, s49
 v_mov_b32 v20, -1
 v_mov_b32 v21, -1
 v_mov_b32 v22, -1
 v_mov_b32 v23, -1
 v_mov_b32 v12, {LFLAG}''')
    if opt.get('zearly'):
        for r in list(range(24,40))+list(range(44,48)): A(f'v_mov_b32 v{r}, 0')
    A(f'''L_Gf:
 s_sleep {opt.get('gsl',1)}
 ds_read_b128 v[8:11], v12''')
    G('f')
    A(f'''s_waitcnt lgkmcnt(0)
 v_min3_u32 v8, v8, v9, v10
 v_min_u32 v8, v8, v11
 v_cmp_ne_u32 vcc, s15, v8
 s_cbranch_vccnz L_Gf
 s_mov_b64 exec, 0xffff
 buffer_store_dwordx4 v[20:23], v62, s[4:7], s22 offen sc1
 buffer_store_dwordx4 v[20:23], v62, s[4:7], s19 offen {LS}
 s_cmp_gt_u32 s14, 1
 s_cbranch_scc1 L_Gh23''')
    copies('h')
    A(f'''s_cmp_eq_u32 s14, 1
 s_cbranch_scc1 L_Gh1
 s_mov_b64 exec, s[52:53]
 buffer_store_dwordx4 v[20:23], v56, s[4:7], s37 offen {LS}
 s_mov_b64 exec, s[54:55]
 buffer_store_dwordx2 v[20:21], v59, s[4:7], s37 offen offset:512 {LS}
 s_mov_b64 exec, -1
 buffer_load_dwordx4 v[48:51], v58, s[4:7], s62 offen sc1
 buffer_load_dwordx4 v[52:55], v58, s[4:7], s62 offen offset:128 sc1
 s_branch L_Gh
L_Gh1:
 s_mov_b64 exec, -1
 buffer_store_dwordx2 v[20:21], v56, s[4:7], s37 offen {LS}
 s_branch L_Gh
L_Gh23:
 s_cmp_eq_u32 s14, 2
 s_cbranch_scc0 L_Gh3
 s_mov_b32 exec_lo, -1
 {'buffer_load_dword v57, v58, s[4:7], s18 offen sc1' if opt.get('touch',1) else ''}
 s_branch L_Gh
L_Gh3:''')
    if opt.get('st'):
        A(f'''s_and_b32 s36, s15, 7
 s_cbranch_scc1 L_st1
 s_memtime s[96:97]
 s_memrealtime s[98:99]
 s_lshl_b32 s36, s23, 1
 s_add_u32 s36, s36, s15
 s_add_u32 s36, s36, {TS+0x300000}
 s_waitcnt lgkmcnt(0)
 v_mov_b32 v8, s96
 v_mov_b32 v9, s98
 s_mov_b64 exec, 1
 buffer_store_dwordx2 v[8:9], off, s[4:7], s36
L_st1:''')
    if full and opt.get('prog',True):
        A(f'''s_bitcmp1_b32 s15, 0
 s_cbranch_scc0 L_Gh
 s_sub_u32 s36, s15, 1
 v_mov_b32 v8, s36
 s_mov_b64 exec, 1
 buffer_store_dword v8, off, s[4:7], s51 sc1''')
    A(f'''L_Gh:
 s_mov_b64 exec, -1
 buffer_store_dword v20, v2, s[4:7], s37 offen {LS}''')
    vdma('s38', 0, DW)
    if opt.get('zearly'):
        for r in range(40,44): A(f'v_mov_b32 v{r}, 0')
    A(f'''s_setprio 3
 s_barrier                       ; barrier T
 s_branch L_Gloop
L_Gxr:
 s_mov_b64 exec, vcc
 s_branch L_Gx
L_Gend:
 s_cmp_gt_u32 s14, 1
 s_cbranch_scc1 {XIT}''')
    copies('e')
    A(f's_mov_b64 exec, -1\n s_branch {XIT}')
    for r in range(4,0,-1):
        for k in range(4): blk(k, r, False)
    UB = lambda b: 64 + 8*b
    UM = lambda b: 36 + 4*b
    FD = lambda b: 96 + 4*b
    A(f'''
L_T:
 s_load_dwordx2 s[8:9], s[0:1], 80
 s_mov_b32 s10, 0x800000
 s_mov_b32 s11, 0x20000
 s_mov_b32 s39, {f2u(SCALE_B)}
 s_lshl_b32 s36, s21, 12
 s_add_u32 s36, s36, s20
 s_add_u32 s36, s36, {SP}
 v_lshl_add_u32 v7, v57, 10, s36
 v_lshl_add_u32 v1, v56, 4, v7
 v_lshl_add_u32 v7, v56, 3, v7
 v_lshlrev_b32 v59, 4, v0
 s_lshl_b32 s36, s21, 11
 s_add_u32 s36, s36, s20
 s_add_u32 s36, s36, {VP}
 v_add_u32 v2, s36, v59
 s_lshl_b32 s23, s12, 2
 s_add_u32 s23, s23, s21         ; head
 v_lshlrev_b32 v5, 9, v57
 v_lshl_add_u32 v5, v56, 4, v5
 v_and_b32 v59, 1, v57
 v_mul_u32_u24 v4, 1280, v59
 v_lshl_add_u32 v4, v56, 4, v4
 v_lshrrev_b32 v59, 1, v57
 v_lshl_add_u32 v4, v59, 3, v4
 s_mul_i32 s36, s21, 2560
 s_add_u32 s36, s36, {RT}
 v_add_u32 v4, s36, v4
 v_mov_b32 v63, 0x4444
 v_and_b32 v59, 4, v0
 v_cmp_ne_u32 vcc, 0, v59
 v_cndmask_b32 v63, v63, v58, vcc
 s_lshl_b32 s36, s21, 2
 s_add_u32 s37, s36, {LFLAG}
 v_mov_b32 v58, s37
 v_and_b32 v59, 7, v0
 s_add_u32 s37, s36, {RINV}
 v_lshl_add_u32 v6, v59, 4, s37
 s_lshl_b32 s24, s12, 4
 s_add_u32 s24, s24, s13
 s_lshl_b32 s36, s24, 7
 s_lshl_b32 s37, s21, 4
 s_add_u32 s36, s36, s37
 s_add_u32 s36, s36, {H3}
 v_lshlrev_b32 v53, 2, v0
 v_add_u32 v53, s36, v53
 v_mov_b32 v55, 0
 v_mov_b32 v8, 0
 v_mov_b32 v9, 0
 v_mov_b32 v10, 0
 v_mov_b32 v11, 0
 ds_write_b32 v58, v8
 ds_write_b32 v58, v8 offset:16
 ; selection matrices a96..a107, mask v28..31
 v_mov_b32 v16, s40
 v_mov_b32 v17, s41''')
    for m in range(3):
        for r in range(4):
            e = 2*r
            row = [e, 8+e, 8+4*r][m]
            if m == 2 and r >= 2: A(f'v_accvgpr_write_b32 a{96+4*m+r}, 0'); continue
            A(f'v_cmp_eq_u32 vcc, {row}, v56\n v_cndmask_b32 v12, 0, v16, vcc\n v_cmp_eq_u32 vcc, {row+1}, v56\n v_cndmask_b32 v12, v12, v17, vcc\n v_accvgpr_write_b32 a{96+4*m+r}, v12')
    A('v_mov_b32 v12, 0xf149f2ca\n v_cmp_gt_u32 vcc, 32, v0')
    for r in range(4): A(f'v_cndmask_b32 v{28+r}, 0, v12, vcc')
    A('v_mov_b32 v122, 0\n v_mov_b32 v123, 0')
    if full:
        A(f'''s_lshl_b32 s36, s24, 8
 s_lshl_b32 s37, s21, 6
 s_add_u32 s36, s36, s37
 s_add_u32 s36, s36, {FL}
 v_lshlrev_b32 v12, 4, v0
 s_mov_b64 exec, 15
 buffer_store_dwordx4 v[8:11], v12, s[4:7], s36 offen sc1
 s_lshl_b32 s36, s24, 7
 s_add_u32 s36, s36, {FC}
 buffer_store_dwordx4 v[8:11], v12, s[4:7], s36 offen sc1
 s_mov_b64 exec, -1
 v_lshlrev_b32 v52, 2, v0
 s_lshl_b32 s36, s12, 10
 s_add_u32 s36, s36, {FL}
 v_add_u32 v52, s36, v52''')
    A(f'''
 v_lshlrev_b32 v10, 14, v57
 v_lshl_add_u32 v10, v56, 3, v10
 s_lshl_b32 s36, s13, 7
 v_add_u32 v10, s36, v10
 s_waitcnt vmcnt(0) lgkmcnt(0)
 s_barrier
 s_cmp_lg_u32 s14, 4
 s_cbranch_scc1 L_Tw
 s_mov_b64 exec, 1
 v_mov_b32 v8, 128
 v_mov_b32 v9, 1
 global_atomic_add v8, v9, s[16:17] sc1
 s_mov_b64 exec, -1
L_Tw:
 s_lshl_b32 s36, s23, 18
''')
    for kap in range(4):
        for e in range(8):
            r = 64 + (kap*8+e)*2
            A(f's_add_u32 s37, s36, {(32*kap+e)*2048}\n buffer_load_dwordx2 v[{r}:{r+1}], v10, s[8:11], s37 offen')
    A('s_waitcnt vmcnt(0)')
    wo = lambda b, kap: 16*b + 4*kap
    for kap in range(4):
        for p in range(4):
            ra = 64 + (kap*8+2*p)*2; rb = ra + 2
            for b in range(4):
                A(f'v_perm_b32 v12, v{rb+b//2}, v{ra+b//2}, s{42+(b&1)}\n v_accvgpr_write_b32 a{wo(b,kap)+p}, v12')
    for b in range(4): A(f'v_mov_b32 v{UB(b)+2}, 0\n v_mov_b32 v{UB(b)+3}, 0')
    A(f'''s_barrier
 s_cmp_lg_u32 s14, 4
 s_cbranch_scc1 L_Ti2
 s_mov_b64 exec, 1
 s_lshl_b32 s36, s24, 7
 s_and_b32 s37, s36, 0x2000
 s_add_u32 s36, s36, s37
 s_add_u32 s36, s36, {XP+0x100000}
 s_add_u32 s37, s36, 0x2000
 buffer_store_dword v9, off, s[4:7], s37 sc1
 s_waitcnt vmcnt(0)
 s_memtime s[26:27]
 s_waitcnt lgkmcnt(0)
 buffer_store_dword v9, off, s[4:7], s36 sc1
 s_waitcnt vmcnt(0)
 s_memtime s[28:29]
 s_waitcnt lgkmcnt(0)
 buffer_store_dword v9, off, s[4:7], s37 sc1
 s_waitcnt vmcnt(0)
 s_memtime s[30:31]
 s_waitcnt lgkmcnt(0)
 s_sub_u32 s26, s28, s26
 s_sub_u32 s28, s30, s28
 s_cmp_gt_u32 s26, s28
 s_cselect_b32 s26, 0x101, 1
 v_mov_b32 v8, 132
 v_mov_b32 v9, s26
 global_atomic_add v8, v9, s[16:17] sc1
 v_mov_b32 v8, 128
L_Ti:
 global_load_dwordx2 v[10:11], v8, s[16:17] sc1''')
    G('i')
    A(f'''s_waitcnt vmcnt(0)
 v_and_b32 v9, 0xff, v11
 v_min_u32 v9, v9, v10
 v_cmp_ne_u32 vcc, 128, v9
 s_cbranch_vccnz L_Ti
 v_mov_b32 v9, 0x2000
 v_cmp_lt_u32 vcc, 0x4100, v11
 v_cndmask_b32 v9, 0, v9, vcc
 {f"v_mov_b32 v9, {opt['sel']<<13}" if 'sel' in opt else ''}
 ds_write_b32 v58, v9 offset:32
 s_mov_b64 exec, -1''')
    def kvpoll(t, mask, so):
        A(f's_mov_b64 exec, {mask}\nL_kv{t}:\n buffer_load_dword v9, v52, s[4:7], {so} offen sc1')
        G('i')
        A(f's_waitcnt vmcnt(0)\n v_cmp_eq_u32 vcc, 0, v9\n s_cbranch_vccnz L_kv{t}\n s_mov_b64 exec, -1')
    if full: kvpoll('0', '0xffff', '0')
    A(f'''s_waitcnt lgkmcnt(0)
L_Ti2:
 s_barrier
 s_lshl_b32 s36, s23, 13
 s_add_u32 s36, s36, {VF}
 s_add_u32 s37, s36, 4096''')
    for q in range(8):
        A(f'buffer_load_dwordx4 a[{64+4*q}:{67+4*q}], v5, s[4:7], {"s36" if (q&3)<2 else "s37"} offen offset:{2048*(q&1)+256*(q>>2)} sc1')
    A(f'''s_lshl_b32 s36, s21, 13
 s_add_u32 s36, s36, {VXB}
 v_add_u32 v5, s36, v5
 s_waitcnt vmcnt(0)
L_Tux:''')
    for kap in range(4):
        for H in range(2):
            for b in range(4):
                d = 96 + (H*4+b)*4
                c = '0' if kap == 0 else f'v[{d}:{d+3}]'
                q = H*4+kap
                A(f'v_mfma_f32_16x16x32_bf16 v[{d}:{d+3}], a[{64+4*q}:{67+4*q}], a[{wo(b,kap)}:{wo(b,kap)+3}], {c}')
    for r in range(36,52): A(f'v_mov_b32 v{r}, 0')
    for H in range(2):
        for b in range(4):
            d = 96 + (H*4+b)*4
            A(f'v_cvt_pk_bf16_f32 v{UB(b)+4*H}, v{d}, v{d+1}\n v_cvt_pk_bf16_f32 v{UB(b)+4*H+1}, v{d+2}, v{d+3}')
    for r in list(range(96,112))+[122,123]: A(f'v_mov_b32 v{r}, 0')
    A(f'''s_and_b32 s45, s15, 3
 s_lshl_b32 s45, s45, 17
 s_add_u32 s38, s15, 1           ; tag
 v_mov_b32 v54, s38''')
    if full:
        A(f'''s_add_u32 s48, s15, 2
 s_and_b32 s47, s48, 0x47
 s_cbranch_scc1 L_Tf
 s_cmp_lg_u32 s14, 4
 s_cbranch_scc1 L_Tf
 s_lshl_b32 s47, s48, 4''')
        kvpoll('1', '15', 's47')
    A(f'''L_Tf:
 s_setprio 1
 s_mov_b64 exec, 0xf
 s_barrier                       ; barrier G
 s_cmp_eq_u32 s15, 63
 s_cbranch_scc1 L_Tend''')
    stamp(0)
    A('L_Th:\n buffer_load_dword v55, v53, s[4:7], 0 offen sc1')
    G('h')
    A(f's_waitcnt vmcnt({opt.get("h3d",2)})\n v_cmp_ne_u32 vcc, s38, v55\n s_cbranch_vccnz L_Th\n s_mov_b64 exec, -1')
    for k in range(opt.get('hdl',0)): A('ds_read_b32 v14, v6\n s_waitcnt lgkmcnt(0)')
    def s_issue():
        A('buffer_load_dwordx4 v[112:115], v1, s[4:7], s45 offen sc1\n buffer_load_dwordx4 v[116:119], v1, s[4:7], s45 offen offset:256 sc1\n buffer_load_dwordx2 v[120:121], v7, s[4:7], s45 offen offset:512 sc1')
    def v_issue():
        for k in range(2): A(f'buffer_load_dwordx4 v[{20+4*k}:{23+4*k}], v2, s[4:7], s45 offen offset:{1024*k} sc1')
    s_issue()
    if not opt.get('vlate'): v_issue()
    stamp(1)
    for q in range(8): A(f'ds_read_b128 a[{64+4*q}:{67+4*q}], v5 offset:{2048*(q&3)+256*(q>>2)}')
    if opt.get('vlate'): v_issue()
    SM = ['v_mfma_f32_16x16x32_bf16 v[8:11], a[96:99], v[112:115], 0', 'v_mfma_f32_16x16x32_bf16 v[8:11], a[100:103], v[116:119], v[8:11]', 'v_mfma_f32_16x16x32_bf16 v[12:15], a[104:107], v[120:123], v[28:31]']
    um = [f'v_smfmac_f32_16x16x64_bf16 v[{UM(b)}:{UM(b)+3}], v[{20+4*k}:{23+4*k}], a[{16*b+8*k}:{16*b+8*k+7}], v63' for k in range(2) for b in range(4)]
    uc = [x for b in range(4) for x in (f'v_cvt_pk_bf16_f32 v{UB(b)+6}, v{UM(b)}, v{UM(b)+1}', f'v_cvt_pk_bf16_f32 v{UB(b)+7}, v{UM(b)+2}, v{UM(b)+3}')]
    A(f'''s_waitcnt vmcnt(4)
 {SM[0]}
 s_waitcnt vmcnt(3)
 {SM[1]}
 s_waitcnt vmcnt(2)
L_Ts:
 {SM[2]}
 v_max3_u32 v16, v112, v116, v120
 v_cmp_eq_u32 vcc, -1, v16
 s_cbranch_vccnz L_Tsr''')
    stamp(2)
    A(f'''s_waitcnt vmcnt(1)
 {um[0]}
 {um[1]}
 v_max3_f32 v16, v8, v9, v10
 v_max3_f32 v16, v16, v11, v12
 v_max_f32 v16, v16, v13
 {um[2]}
 v_max_f32_dpp v17, v16, v16 row_ror:8 row_mask:0xf bank_mask:0xf
 v_max_f32_dpp v16, v16, v16 row_ror:8 row_mask:0xf bank_mask:0xf
 {um[3]}
 s_waitcnt vmcnt(0)
 v_permlane16_swap_b32 v16, v17
 v_max_f32 v18, v16, v17
 v_max_f32 v16, v16, v17
 {um[4]}
 v_max_u32 v19, v20, v24
 v_permlane32_swap_b32 v16, v18
 v_max_f32 v16, v16, v18
 v_mul_f32 v16, s39, v16
 {um[5]}
 v_cmp_eq_u32 vcc, -1, v19
 ds_write_b32 v58, v54
 v_fma_f32 v8, v8, s39, -v16
 v_fma_f32 v9, v9, s39, -v16
 {um[6]}
 v_exp_f32 v8, v8
 v_fma_f32 v10, v10, s39, -v16
 {um[7]}
 v_exp_f32 v9, v9
 v_fma_f32 v11, v11, s39, -v16
 v_exp_f32 v10, v10
 v_fma_f32 v12, v12, s39, -v16
 v_exp_f32 v11, v11
 v_fma_f32 v13, v13, s39, -v16
 v_exp_f32 v12, v12
 v_cvt_pk_bf16_f32 v32, v8, v9
 v_exp_f32 v13, v13
 v_cvt_pk_bf16_f32 v34, v10, v11
 s_cbranch_vccnz L_Tvr
L_Tv:
 {uc[0]}
 {uc[1]}
 v_cvt_pk_bf16_f32 v33, v12, v13
 v_cvt_pk_bf16_f32 v35, v12, v13''')
    stamp(3)
    pv = lambda b: f'v_smfmac_f32_16x16x64_bf16 v[{FD(b)}:{FD(b)+3}], v[32:35], v[{UB(b)}:{UB(b)+7}], v3'
    A(f'''{uc[4]}
 {uc[5]}
 {pv(0)}
 {uc[2]}
 {uc[3]}
 {pv(2)}
 {uc[6]}
 {uc[7]}
 {pv(1)}
 v_add_f32 v16, v8, v9
 v_add_f32 v17, v10, v11
 {pv(3)}
 v_add_f32 v16, v16, v17
 v_add_f32 v17, v12, v13
 v_add_f32 v16, v16, v17''')
    sw = lambda a,b: [f'v_permlane32_swap_b32 v{FD(a)+i}, v{FD(b)+i}' for i in range(4)]
    s0, s1 = sw(0,2), sw(1,3)
    a0 = [f'v_add_f32 v{8+2*i}, v{FD(0)+i}, v{FD(2)+i}' for i in range(4)]
    a1 = [f'v_add_f32 v{9+2*i}, v{FD(1)+i}, v{FD(3)+i}' for i in range(4)]
    A('\n'.join([s0[0], s0[1],
      'v_add_f32_dpp v17, v16, v16 row_ror:8 row_mask:0xf bank_mask:0xf', 'v_add_f32_dpp v16, v16, v16 row_ror:8 row_mask:0xf bank_mask:0xf',
      s0[2], s0[3], 'v_permlane16_swap_b32 v16, v17', 'v_add_f32 v18, v16, v17', 'v_add_f32 v16, v16, v17', s1[0], s1[1],
      'v_permlane32_swap_b32 v16, v18', a0[0], a1[0], a0[1], a1[1], 'ds_write2_b64 v4, v[8:9], v[10:11] offset0:0 offset1:40', 'v_add_f32 v16, v16, v18', s1[2], s1[3], 'v_rcp_f32 v16, v16',
      a0[2], a1[2], a0[3], a1[3], 'ds_write2_b64 v4, v[12:13], v[14:15] offset0:80 offset1:120', 'ds_write_b32 v6, v16']))
    stamp(4)
    A('''s_waitcnt lgkmcnt(0)
 s_barrier                       ; barrier T
 s_setprio 0''')
    flush_ts(5, 12, 't')
    A(f'''s_add_u32 s15, s15, 1
 s_branch L_Tux
L_Tend:
 s_mov_b64 exec, -1
 s_branch {XIT}
L_Tsr:
 s_mov_b64 exec, vcc''')
    s_issue(); A('s_mov_b64 exec, -1'); v_issue(); G('s')
    A(f's_waitcnt vmcnt(2)\n {SM[0]}\n {SM[1]}\n s_branch L_Ts\nL_Tvr:\n s_mov_b64 exec, vcc')
    v_issue(); A('s_mov_b64 exec, -1'); G('v')
    for r in range(36,52): A(f'v_mov_b32 v{r}, 0')
    A('s_waitcnt vmcnt(0)\n v_max_u32 v19, v20, v24\n v_cmp_eq_u32 vcc, -1, v19\n s_cbranch_vccnz L_Tvr')
    A('\n'.join(um))
    A('s_branch L_Tv')

SPLIT='''s_lshr_b32 s10, s12, 2
 s_and_b32 s12, s12, 3
 s_lshl_b32 s12, s12, 1
 s_lshr_b32 s11, s13, 4
 s_add_u32 s12, s12, s11
 s_and_b32 s13, s13, 15
 s_lshl_b32 s10, s10, 4
 s_add_u32 s13, s13, s10'''
def gen_test(opt):
    A = Asm()
    A(f'''
 s_load_dwordx2 s[4:5], s[0:1], 120
 s_load_dwordx2 s[16:17], s[0:1], 112
 s_getreg_b32 s12, hwreg(HW_REG_XCC_ID, 0, 4)
 s_mov_b32 s6, 0x10000000
 s_mov_b32 s7, 0x20000
 v_lshrrev_b32 v3, 6, v0
 v_readfirstlane_b32 s14, v3
 v_and_b32 v0, 63, v0
 s_and_b32 s12, s12, 7
 s_waitcnt lgkmcnt(0)
 v_mov_b32 v11, 30000
 s_cmp_lg_u32 s14, 0
 s_cbranch_scc1 L_r1
 s_lshl_b32 s10, s12, 2
 v_mov_b32 v8, s10
 v_mov_b32 v9, 1
 s_mov_b64 exec, 1
 global_atomic_add v10, v8, v9, s[16:17] sc0 sc1
 s_waitcnt vmcnt(0)
 ds_write_b32 v11, v10
 s_mov_b64 exec, -1
 s_waitcnt lgkmcnt(0)
L_r1:
 s_barrier
 ds_read_b32 v10, v11
 s_waitcnt lgkmcnt(0)
 v_readfirstlane_b32 s13, v10
 s_cmp_ge_u32 s13, 32
 s_cbranch_scc1 L_end
 {SPLIT}
 s_cmp_ge_u32 s13, 16
 s_cbranch_scc1 L_end
''')
    gen_chain(A, opt)
    A('L_end:')
    n = A.pad_fast(opt.get('mt', True))
    return A.text()
if __name__ == '__main__':
    print(gen_test({}))
```

```python
import sys
from asmlib import *
import chain2 as C
from bulk import *
NAME='gated_mix__grouped_kv_mqa__memory_aug_recurrent_mem_tr__prompt'
def gen(opt):
    A=Asm()
    TL[0]=opt.get('tl',False)
    SLP[0]=opt.get('slp',4)
    guard=opt.get('guard',True)
    GUARD[0]='s_add_u32 s61, s61, 1\n s_cmp_gt_u32 s61, 100000\n s_cbranch_scc1 LBL' if guard else ''
    G2='s_add_u32 s62, s62, 1\n s_cmp_gt_u32 s62, 400\n s_cbranch_scc1 L_end' if guard else ''
    SPLIT='''s_lshr_b32 s10, s12, 2
 s_and_b32 s12, s12, 3
 s_lshl_b32 s12, s12, 1
 s_lshr_b32 s11, s13, 4
 s_add_u32 s12, s12, s11
 s_and_b32 s13, s13, 15
 s_xor_b32 s10, s10, %d
 s_lshl_b32 s10, s10, 4
 s_add_u32 s13, s13, s10'''%(opt.get('split',1)-1)
    A(f'''
 s_load_dwordx2 s[4:5], s[0:1], 120
 s_load_dwordx2 s[16:17], s[0:1], 112
 s_getreg_b32 s12, hwreg(HW_REG_XCC_ID, 0, 4)
 s_mov_b32 s6, 0x10000000
 s_mov_b32 s7, 0x20000
 v_lshrrev_b32 v3, 6, v0
 v_readfirstlane_b32 s14, v3
 v_and_b32 v0, 63, v0
 s_and_b32 s12, s12, 7
 s_mov_b32 s63, 0
 s_mov_b32 s61, 0
 s_mov_b32 s62, 0
 v_mov_b32 v11, {LCTL}
 s_waitcnt lgkmcnt(0)
 s_cmp_lg_u32 s14, 0
 s_cbranch_scc1 L_r1
 s_lshl_b32 s10, s12, 2
 v_mov_b32 v8, s10
 v_mov_b32 v9, 1
 s_mov_b64 exec, 1
 global_atomic_add v10, v8, v9, s[16:17] sc0 sc1
 s_waitcnt vmcnt(0)
 ds_write_b32 v11, v10
 s_mov_b64 exec, -1
 s_waitcnt lgkmcnt(0)
L_r1:
 s_barrier
 ds_read_b32 v10, v11
 s_waitcnt lgkmcnt(0)
 v_readfirstlane_b32 s13, v10
 s_cmp_ge_u32 s13, 32
 s_cbranch_scc1 L_end
 {SPLIT}
 s_lshl_b32 s95, s12, 5
 s_add_u32 s95, s95, s13
 s_lshl_b32 s95, s95, 10
 s_add_u32 s95, s95, {C.TS+0x100000}
 s_sub_u32 s40, s13, 16
 s_cbranch_scc0 L_disp
''')
    tlog(A,'2000',0,TL[0])
    o=dict(hp=1,h3d=8,dw=4,pace=0); o.update(opt); o['full']=True
    C.gen_chain(A,o)
    A(f'''L_cend:
 s_setprio 0
 s_lshl_b32 s36, s12, 11
 s_lshl_b32 s37, s13, 7
 s_add_u32 s36, s36, s37
 s_add_u32 s36, s36, {FC}
 s_mov_b32 s37, 1
 s_mov_b32 s39, 64
 s_mov_b32 s63, 1
 s_mov_b32 s61, 0
 s_mov_b32 s62, 0
L_next:
 {G2}
 s_waitcnt vmcnt(0)
 s_barrier
 v_mov_b32 v11, {LCTL}
 s_cmp_lg_u32 s14, 0
 s_cbranch_scc1 L_n2
 s_mov_b64 exec, 1
 s_lshl_b32 s10, s12, 2
 s_add_u32 s10, s10, 32
 v_mov_b32 v8, s10
 v_mov_b32 v9, 1
 global_atomic_add v10, v8, v9, s[16:17] sc0 sc1
 s_cmp_lg_u32 s63, 0
 s_cbranch_scc1 L_n0
 v_mov_b32 v8, 128
L_ni:
 global_load_dword v9, v8, s[16:17] sc1
 s_waitcnt vmcnt(0)
 {GUARD[0].replace('LBL','L_n0')}
 v_cmp_ne_u32 vcc, 128, v9
 s_cbranch_vccnz L_ni
L_n0:
 s_cmp_eq_u32 s37, 0
 s_cbranch_scc1 L_n1
 s_mov_b32 exec_lo, s37
 v_lshlrev_b32 v8, 7, v0
 v_mov_b32 v9, s39
 buffer_store_dword v9, v8, s[4:7], s36 offen sc1
 s_mov_b64 exec, 1
 s_waitcnt vmcnt(1)
 s_branch L_n3
L_n1:
 s_waitcnt vmcnt(0)
L_n3:
 ds_write_b32 v11, v10
 s_mov_b64 exec, -1
 s_waitcnt lgkmcnt(0)
L_n2:
 s_mov_b32 s63, 1
 s_barrier
 ds_read_b32 v10, v11
 s_waitcnt lgkmcnt(0)
 v_readfirstlane_b32 s40, v10
 s_add_u32 s40, s40, 16
L_disp:
 s_mov_b32 s37, 1
 s_mov_b32 s39, 1''')
    tlog(A,'s40',0,TL[0])
    if opt.get('maxt'): A(f's_cmp_ge_u32 s40, {opt["maxt"]}\n s_cbranch_scc1 L_end')
    srd(A,8,0,0x400000)
    def kvq(mat_code, lbl, bm_shift, colcode):
        pass
    def t_kv0():
        return f'''s_lshr_b32 s33, s40, 3
 s_lshl_b32 s24, s33, 18
 s_lshl_b32 s27, s33, 20
 s_and_b32 s34, s40, 3
 s_lshl_b32 s35, s12, 2
 s_add_u32 s34, s34, s35
 s_lshl_b32 s25, s34, 8
 s_lshl_b32 s34, s34, 13
 s_add_u32 s27, s27, s34
 s_lshl_b32 s36, s12, 10
 s_lshl_b32 s34, s40, 2
 s_add_u32 s36, s36, s34
 s_add_u32 s36, s36, {FKV}
 s_bfe_u32 s41, s40, 0x10002
 s_mov_b32 s42, 0
 s_branch L_bw'''
    def big(rbcode, matcode, fl):
        return f'''{rbcode}
 {matcode}
 s_lshl_b32 s24, s33, 19
 s_lshl_b32 s27, s33, 21
 s_and_b32 s34, s40, 1
 s_lshl_b32 s35, s12, 1
 s_add_u32 s34, s34, s35
 s_lshl_b32 s25, s34, 9
 s_lshl_b32 s34, s34, 14
 s_add_u32 s27, s27, s34
 s_lshl_b32 s36, s12, 3
 s_add_u32 s36, s36, s33
 s_lshl_b32 s36, s36, 7
 {fl}
 s_add_u32 s36, s36, s34
 s_add_u32 s36, s36, {FKV}
 s_mov_b32 s42, 1
 s_branch L_bw'''
    t_kv=lambda rb0: big(f's_lshr_b32 s33, s40, 2\n s_add_u32 s33, s33, {rb0}', 's_bfe_u32 s41, s40, 0x10001', 's_and_b32 s34, s40, 3\n s_lshl_b32 s34, s34, 2')
    t_q=lambda rb0: big(f's_lshr_b32 s33, s40, 1\n s_add_u32 s33, s33, {rb0}', 's_mov_b32 s41, 2', 's_and_b32 s34, s40, 1\n s_lshl_b32 s34, s34, 2\n s_add_u32 s34, s34, 64')
    t_aq=f'''s_load_dwordx2 s[20:21], s[0:1], 8
 s_mov_b32 s22, 0x200000
 s_mov_b32 s23, 0x20000
 s_lshl_b32 s24, s12, 19
 s_lshl_b32 s25, s40, 9
 s_lshl_b32 s27, s40, 14
 s_add_u32 s27, s27, s24
 s_add_u32 s27, s27, {QA}
 s_mov_b32 s28, 65536
 s_mov_b32 s32, 2048
 s_lshl_b32 s36, s12, 7
 s_lshl_b32 s34, s40, 2
 s_add_u32 s36, s36, s34
 s_add_u32 s36, s36, {FAQ}
 s_branch L_gemmb'''
    t_at='''s_lshr_b32 s24, s40, 1
 s_lshl_b32 s33, s12, 3
 s_add_u32 s24, s24, s33
 s_and_b32 s25, s40, 1
 s_branch L_attA'''
    t_st='''s_lshr_b32 s33, s40, 2
 s_and_b32 s34, s40, 1
 s_bitcmp1_b32 s40, 1
 s_cbranch_scc1 L_st1
 s_lshl_b32 s24, s33, 1
 s_add_u32 s24, s24, s34
 s_branch L_attB
L_st1:
 s_lshl_b32 s24, s33, 2
 s_lshl_b32 s25, s12, 1
 s_add_u32 s25, s25, s34
 s_lshl_b32 s25, s25, 7
 s_branch L_op4'''
    T=[(16,t_kv0()),(1,'s_branch L_akv'),(4,t_kv(1)),(4,t_aq),(24,t_kv(2)),(16,t_at),(16,t_q(0)),(64,t_st)]
    for i,(n,code) in enumerate(T):
        A(f's_cmp_ge_u32 s40, {n}\n s_cbranch_scc1 L_d{i}\n {code}\nL_d{i}:\n s_sub_u32 s40, s40, {n}')
    A(f'''s_branch L_end
L_bw:
 s_lshl_b32 s33, s41, 3
 s_add_u32 s33, s33, 64
 s_cmp_eq_u32 s41, 2
 s_cselect_b32 s33, 56, s33
 s_load_dwordx2 s[20:21], s[0:1], s33
 s_mov_b32 s22, 0x800000
 s_mov_b32 s23, 0x20000
 s_add_u32 s41, s41, 1
 s_lshl_b32 s41, s41, 24
 s_add_u32 s27, s27, s41
 s_mov_b32 s28, 0x40000
 s_mov_b32 s32, 8192
 s_cmp_eq_u32 s42, 0
 s_cbranch_scc1 L_gemms
''')
    gemm(A,'b',4,2,2,4,2)
    gemm(A,'s',2,1,2,4,4)
    akv(A); attnA(A); attnB(A); oproj(A,'4',4)
    A('L_end:')
    A.pad_fast(opt.get('mt',True))
    return A.text()
def full_text(opt):
    ref=open(f'cdna_kernels/{NAME}.s.ref').read()
    head,rest=ref.split(f'{NAME}_kernel:\n',1)
    tail=rest[rest.index('s_endpgm'):]
    head=head.replace('; @launch grid=(8192,1,1) block=(256,1,1) lds=0',f'; @launch grid=(256,1,1) block=(512,1,1) lds={LDSZ}')
    tail=tail.replace('accum_offset 256','accum_offset 128')
    return head+f'{NAME}_kernel:\n'+gen(opt)+tail
if __name__=='__main__':
    opt=eval(sys.argv[1]) if len(sys.argv)>1 else {}
    out=sys.argv[2] if len(sys.argv)>2 else f'cdna_kernels/{NAME}.s'
    open(out,'w').write(full_text(opt))
```

```python
from asmlib import *
from chain3 import EX, PO, KX, VF, QX, FL, FC, f2u
QA=0x6000000; KVA=0x6400000; GT=0x6480000; OP=0x7000000; OPS=65536
LDSZ=163840; LCTL=LDSZ-64
FKV=FL; FA=FL+128*128; FAQ=FL+129*128; FO=FL+192*128
LOG2E=1.4426950408889634
MF='v_mfma_f32_32x32x16_bf16'
GUARD=['']; TL=[False]; SLP=[4]
def R(p,b,n): return f'{p}[{b}:{b+n-1}]'
def interleave(M, O):
    out=[]; n=len(M); k=0
    for i,m in enumerate(M):
        out.append(m)
        e=(len(O)*(i+1))//n
        out+=O[k:e]; k=e
    return out
def srd(A, s, koff, size):
    A(f's_load_dwordx2 s[{s}:{s+1}], s[0:1], {koff}\n s_mov_b32 s{s+2}, {size}\n s_mov_b32 s{s+3}, 0x20000')
def waitflags(A, tag, mask, va='v2', vt='v3', bar=True):
    A(f'''s_cmp_lg_u32 s14, 0
 s_cbranch_scc1 L_wf2{tag}
 s_mov_b64 exec, {mask}
L_wf{tag}:
 buffer_load_dword v1, {va}, s[4:7], 0 offen sc1
 s_waitcnt vmcnt(0)
 v_cmp_lt_u32 vcc, v1, {vt}
 s_cbranch_vccz L_wf1{tag}
 {GUARD[0].replace('LBL','L_wf1'+tag)}
 s_sleep {SLP[0]}
 s_branch L_wf{tag}
L_wf1{tag}:
 s_mov_b64 exec, -1
L_wf2{tag}:''')
    tlog(A,'1000',0,TL[0])
    if bar: A('s_barrier')

def gemm(A, tag, MB, NB, WM, WN, NS):
    BM=32*MB*WM; BN=32*NB*WN; XI=BM//64; WROW=BN*2; RPI=1024//WROW; WI=8//RPI
    XS=BM*128; WS=BN*128; WB=NS*XS
    assert WM*WN==8 and NS*(XS+WS)<=LCTL
    lw={256:5,128:4,64:3}[BN]
    A(f'L_gemm{tag}:')
    A(f'''s_mul_i32 s33, s14, {XI*8}
 v_lshrrev_b32 v16, 3, v0
 v_add_u32 v16, s33, v16
 v_and_b32 v17, 7, v0''')
    for i in range(XI):
        A(f'''v_add_u32 v18, {8*i}, v16
 v_bfe_u32 v19, v18, 1, 3
 v_xor_b32 v19, v19, v17
 v_lshlrev_b32 v18, 11, v18
 v_lshl_add_u32 v{1+i}, v19, 4, v18''')
        if i: A(f'v_subrev_u32 v{1+i}, {1024*i}, v{1+i}')
    A(f'''s_lshl_b32 s33, s14, 3
 v_lshrrev_b32 v16, {lw}, v0
 v_add_u32 v16, s33, v16
 v_and_b32 v17, {(1<<lw)-1}, v0''')
    for i in range(WI):
        A(f'v_add_u32 v18, {RPI*i}, v16')
        A('v_and_b32 v19, 3, v18' if BN>=128 else 'v_bfe_u32 v19, v18, 1, 1')
        A(f'''v_lshlrev_b32 v19, 2, v19
 v_xor_b32 v19, v19, v17
 v_mul_u32_u24 v18, s32, v18
 v_lshl_add_u32 v{5+i}, v19, 4, v18''')
        if i: A(f'v_subrev_u32 v{5+i}, {1024*i}, v{5+i}')
    A(f's_lshl_b32 s26, s32, 6\n s_mul_i32 s30, s14, {XI*1024}\n s_mul_i32 s31, s14, {WI*1024}\n s_waitcnt lgkmcnt(0)')
    def dmaL(st):
        b=st%NS; L=[]
        for i in range(XI):
            pre = f's_add_u32 m0, s30, {b*XS}\n' if i==0 else ''
            post = '\n s_add_u32 s24, s24, 128' if i==XI-1 else ''
            L.append(pre+f' buffer_load_dwordx4 v{1+i}, s[8:11], s24 offen offset:{1024*i} lds'+post)
        for i in range(WI):
            pre = f's_add_u32 m0, s31, {WB+b*WS}\n' if i==0 else ''
            post = '\n s_add_u32 s25, s25, s26' if i==WI-1 else ''
            L.append(pre+f' buffer_load_dwordx4 v{5+i}, s[20:23], s25 offen offset:{1024*i} lds'+post)
        return L
    PER=XI+WI
    for st in range(NS-1): A('\n'.join(dmaL(st)))
    lwn={4:2,2:1,8:3,1:0}[WN]
    A(f'''s_lshr_b32 s33, s14, {lwn}        ; wm
 s_and_b32 s34, s14, {WN-1}        ; wn
 v_and_b32 v16, 31, v0
 v_lshrrev_b32 v17, 5, v0
 v_bfe_u32 v18, v0, 1, 3
 v_xor_b32 v18, v18, v17
 s_mul_i32 s35, s33, {MB*4096}
 v_lshl_add_u32 v16, v16, 7, s35''')
    for kk in range(4): A(f'v_xor_b32 v19, {2*kk}, v18\n v_lshl_add_u32 v{9+kk}, v19, 4, v16')
    if NS*XS>65536:
        for kk in range(4): A(f'v_add_u32 v{60+kk}, 65536, v{9+kk}')
    A(f'''v_bfe_u32 v16, v0, 2, 2          ; r
 v_lshl_add_u32 v17, v17, 3, v16
 v_mul_u32_u24 v17, {WROW}, v17
 v_and_b32 v18, 1, v0
 v_lshl_add_u32 v17, v18, 3, v17
 v_add_u32 v17, {WB}, v17
 v_bfe_u32 v18, v0, 4, 1
 v_bfe_u32 v19, v0, 1, 1
 v_lshl_add_u32 v18, v18, 1, v19
 s_mul_i32 s35, s34, {4*NB}
 v_add_u32 v18, s35, v18''')
    if BN<128: A('v_lshrrev_b32 v16, 1, v16')
    A('v_lshlrev_b32 v16, 2, v16')
    for nb in range(NB):
        A(f'v_add_u32 v19, {4*nb}, v18\n v_xor_b32 v19, v19, v16\n v_lshl_add_u32 v{13+nb}, v19, 4, v17')
    A(f'''v_lshlrev_b32 v15, 4, v0
 s_mul_i32 s35, s33, {MB}
 s_mul_i32 s35, s35, s28
 s_add_u32 s27, s27, s35
 s_mul_i32 s35, s34, {NB*2048}
 s_add_u32 s27, s27, s35''')
    FB=4*(MB+NB)
    xr=lambda p,mb: 16+p*FB+4*mb
    wr=lambda p,nb: 16+p*FB+4*MB+4*nb
    acc=lambda mb,nb: R('a',16*(mb*NB+nb),16)
    def reads(st,kk,p):
        b=st%NS; L=[]
        for nb in range(NB):
            for t in range(2): L.append(f'ds_read_b64_tr_b16 {R("v",wr(p,nb)+2*t,2)}, v{13+nb} offset:{b*WS+(16*kk+4*t)*WROW}')
        X=[f'ds_read_b128 {R("v",xr(p,mb),4)}, v{(9 if b*XS<65536 else 60)+kk} offset:{(b*XS+mb*4096)&65535}' for mb in range(MB)]
        return L[:2]+X[:1]+L[2:]+X[1:]
    def mfmas(p, first):
        return [f'{MF} {acc(mb,nb)}, {R("v",wr(p,nb),4)}, {R("v",xr(p,mb),4)}, {"0" if first else acc(mb,nb)}' for mb in range(MB) for nb in range(NB)]
    NK=16
    for st in range(NK+1):
        if st<NK:
            inflight=max(0,min(NS-2, NK-1-st))
            A(f's_waitcnt vmcnt({inflight*PER}) lgkmcnt(0)\n s_barrier')
        else: A('s_waitcnt lgkmcnt(0)')
        if st==0 and TL[0]==3: tlog(A,'1100',0,True)
        D=dmaL(st+NS-1) if st+NS-1<NK else []
        for kk in range(4):
            p=kk&1
            Rd=reads(st,kk,p) if st<NK else []
            if st==0 and kk==0: A('\n'.join(Rd+D)); continue
            if kk: A('s_waitcnt lgkmcnt(0)')
            M=mfmas(p^1, st==0 and kk==1)
            O=Rd
            if st>0 and kk<2:
                h=(len(D)+1)//2; dd=D[:h] if kk==0 else D[h:]
                O=interleave(Rd,dd) if Rd else dd
            A('\n'.join(interleave(M,O)))
            if st==NK: break
    if TL[0]==3: tlog(A,'1101',0,True)
    for mb in range(MB):
        for nb in range(NB):
            q=(mb*NB+nb)&1; t=64+16*q; o=96+8*q; a=16*(mb*NB+nb)
            for i in range(16): A(f'v_accvgpr_read_b32 v{t+i}, a{a+i}')
            for i in range(8): A(f'v_cvt_pk_bf16_f32 v{o+i}, v{t+2*i}, v{t+2*i+1}')
            for j in range(2): A(f'v_permlane32_swap_b32 v{o+4*j}, v{o+4*j+2}\n v_permlane32_swap_b32 v{o+4*j+1}, v{o+4*j+3}')
            for j in range(2): A(f'buffer_store_dwordx4 {R("v",o+4*j,4)}, v15, s[4:7], s27 offen offset:{nb*2048+j*1024} sc1')
        if mb<MB-1: A('s_add_u32 s27, s27, s28')
    A('s_branch L_next')

def akv(A):
    A('L_akv:')
    srd(A,44,16,65536); srd(A,48,24,65536); srd(A,52,96,2048)
    A(f'''v_lshlrev_b32 v15, 4, v0
 s_lshl_b32 s33, s14, 13
 s_mov_b32 s40, 0x3f803f80
 s_waitcnt lgkmcnt(0)''')
    for m in range(2):
        for hh in range(2):
            A(f's_add_u32 s34, s33, {4096*hh}\n s_add_u32 m0, s34, {65536*m}')
            for i in range(4): A(f'buffer_load_dwordx4 v15, s[{44+4*m}:{47+4*m}], s34 offen offset:{1024*i} lds')
    A('s_mov_b32 m0, 131072')
    for i in range(2): A(f'buffer_load_dwordx4 v15, s[52:55], 0 offen offset:{1024*i} lds')
    A(f'''v_and_b32 v16, 31, v0
 v_lshrrev_b32 v17, 5, v0
 v_lshlrev_b32 v1, 11, v16
 v_lshl_add_u32 v1, v17, 4, v1      ; X voffset
 s_lshl_b32 s34, s12, 3
 s_add_u32 s34, s34, s14            ; rowblk32
 s_lshl_b32 s24, s34, 16
 v_bfe_u32 v18, v0, 2, 2
 v_lshl_add_u32 v18, v17, 3, v18
 v_lshlrev_b32 v2, 6, v18
 v_bfe_u32 v18, v0, 4, 1
 v_lshl_add_u32 v2, v18, 5, v2
 v_and_b32 v18, 3, v0
 v_lshl_add_u32 v2, v18, 3, v2
 v_add_u32 v3, 65536, v2
 v_lshlrev_b32 v4, 4, v17
 v_add_u32 v4, 131072, v4
 v_mov_b32 v5, 0
 v_mov_b32 v6, 0''')
    for i in range(32): A(f'v_accvgpr_write_b32 a{i}, 0')
    for f in range(16): A(f'buffer_load_dwordx4 {R("v",64+4*f,4)}, v1, s[8:11], s24 offen offset:{32*f}')
    A('s_mov_b32 s29, 0\n s_waitcnt vmcnt(16)\n s_barrier\nL_akvl:\n s_add_u32 s24, s24, 512')
    for f in range(16):
        x=64+4*f; w=16+12*(f&1)
        for t in range(2):
            A(f'ds_read_b64_tr_b16 {R("v",w+2*t,2)}, v2 offset:{1024*f+256*t}\n ds_read_b64_tr_b16 {R("v",w+4+2*t,2)}, v3 offset:{1024*f+256*t}')
        A(f'ds_read_b128 {R("v",w+8,4)}, v4 offset:{32*f}\n s_waitcnt vmcnt(15) lgkmcnt(0)')
        A(f'{MF} a[0:15], {R("v",w,4)}, {R("v",x,4)}, a[0:15]\n {MF} a[16:31], {R("v",x,4)}, {R("v",w+4,4)}, a[16:31]')
        for e in range(4):
            A(f'''v_lshlrev_b32 v40, 16, v{x+e}
 v_lshlrev_b32 v41, 16, v{w+8+e}
 v_and_b32 v42, 0xffff0000, v{x+e}
 v_and_b32 v43, 0xffff0000, v{w+8+e}
 v_mul_f32 v40, v40, v41
 v_mul_f32 v42, v42, v43
 v_cvt_pk_bf16_f32 v{44+e}, v40, v42''')
        for e in range(4): A(f'v_dot2c_f32_bf16 v{5+(e&1)}, s40, v{44+e}')
        A(f'buffer_load_dwordx4 {R("v",x,4)}, v1, s[8:11], s24 offen offset:{32*f}')
    A(f'''v_add_u32 v2, 16384, v2
 v_add_u32 v3, 16384, v3
 v_add_u32 v4, 512, v4
 s_add_u32 s29, s29, 1
 s_cmp_lt_u32 s29, 4
 s_cbranch_scc1 L_akvl
 s_waitcnt vmcnt(0)
 s_mov_b32 s35, {f2u(32**-0.5*LOG2E)}
 s_lshl_b32 s27, s34, 12
 s_add_u32 s27, s27, {KVA}''')
    for i in range(32): A(f'v_accvgpr_read_b32 v{64+i}, a{i}')
    for i in range(16): A(f'v_mul_f32 v{64+i}, s35, v{64+i}')
    for i in range(16): A(f'v_cvt_pk_bf16_f32 v{96+i}, v{64+2*i}, v{65+2*i}')
    for j in range(2): A(f'v_permlane32_swap_b32 v{96+4*j}, v{98+4*j}\n v_permlane32_swap_b32 v{97+4*j}, v{99+4*j}')
    for j in range(4): A(f'buffer_store_dwordx4 {R("v",96+4*j,4)}, v15, s[4:7], s27 offen offset:{1024*j} sc1')
    A(f'''v_add_f32 v5, v5, v6
 v_mov_b32 v6, v5
 v_permlane32_swap_b32 v5, v6
 v_add_f32 v5, v5, v6
 v_cvt_pk_bf16_f32 v5, v5, v5
 v_lshlrev_b32 v5, 16, v5
 v_mul_f32 v5, {f2u(-LOG2E)}, v5
 v_exp_f32 v5, v5
 v_add_f32 v5, 1.0, v5
 v_rcp_f32 v5, v5
 v_cvt_pk_bf16_f32 v5, v5, v5
 v_lshlrev_b32 v8, 16, v5
 v_sub_f32 v9, 1.0, v8
 v_cvt_pk_bf16_f32 v9, v9, v9
 v_lshlrev_b32 v9, 16, v9
 v_lshlrev_b32 v7, 3, v0
 s_lshl_b32 s27, s34, 8
 s_add_u32 s27, s27, {GT}
 s_mov_b32 exec_hi, 0
 buffer_store_dwordx2 v[8:9], v7, s[4:7], s27 offen sc1
 s_mov_b64 exec, -1
 s_mov_b32 s36, {FA}
 s_branch L_next''')

def attnA(A):
    S=[16,32]; P=[48,56]; KB=[64,72]; VB=[80,88]; C=[96,112]
    O=[0,16]; Lr=[32,48]; Q=[64,72]
    A(f'''L_attA:
 s_lshr_b32 s33, s24, 3
 s_lshl_b32 s33, s33, 7
 s_lshl_b32 s34, s25, 2
 s_add_u32 s33, s33, s34
 s_add_u32 s33, s33, {FAQ-FA}
 v_mul_u32_u24 v2, s33, v0
 v_add_u32 v2, {FA}, v2
 v_lshlrev_b32 v3, 1, v0
 v_lshrrev_b32 v3, v3, 8''')
    waitflags(A,'A','3')
    A(f'''v_lshlrev_b32 v15, 4, v0
 s_lshl_b32 s26, s25, 3
 s_add_u32 s26, s26, s14
 s_lshl_b32 s33, s24, 16
 s_lshl_b32 s34, s26, 12
 s_add_u32 s33, s33, s34
 s_add_u32 s33, s33, {QA}
 s_lshl_b32 s30, s14, 12
 s_mov_b32 s38, 0                   ; pass
 v_and_b32 v4, 31, v0
 v_lshlrev_b32 v4, 3, v4
 s_lshl_b32 s34, s24, 8
 s_add_u32 s34, s34, {GT}
 buffer_load_dword v5, v4, s[4:7], s34 offen sc1''')
    for i in range(4): A(f'buffer_load_dwordx4 {R("a",64+4*i,4)}, v15, s[4:7], s33 offen offset:{1024*i} sc1')
    A('v_mov_b32 v6, 0x3f803f80')
    for i in range(4): A(f'v_accvgpr_write_b32 a{80+i}, v6')
    def dma():
        A(f's_and_b32 s33, s31, 0x1ffff\n s_add_u32 m0, s33, s30\n s_add_u32 s33, s31, s30\n s_add_u32 s33, s33, {KVA}\n s_add_u32 s31, s31, 32768')
        for i in range(4): A(f'buffer_load_dwordx4 v15, s[4:7], s33 offen offset:{1024*i} sc1 lds')
    def start():
        A('s_mov_b32 s31, 0')
        for c in range(3): dma()
        A('s_mov_b32 s29, 0\n v_mov_b32 v1, v15')
    def chunk_top(t):
        A(f''' s_cmp_ge_u32 s31, 0x40000
 s_cbranch_scc1 L_ac1{t}
 s_waitcnt vmcnt(4) lgkmcnt(0)
 s_barrier''')
        dma()
        A(f's_branch L_ac2{t}\nL_ac1{t}:\n s_waitcnt vmcnt(0) lgkmcnt(0)\n s_barrier\nL_ac2{t}:')
    qk=lambda y,kb,c: [f'{MF} {R("v",S[y],16)}, {R("v",KB[kb],4)}, {R("a",Q[y],4)}, {c}', f'{MF} {R("v",S[y],16)}, {R("v",KB[kb]+4,4)}, {R("a",Q[y]+4,4)}, {R("v",S[y],16)}']
    pv=lambda y,vb: [f'{MF} {R("a",O[y],16)}, {R("v",VB[vb],4)}, {R("v",P[y],4)}, {R("a",O[y],16)}', f'{MF} {R("a",Lr[y],16)}, a[80:83], {R("v",P[y],4)}, {R("a",Lr[y],16)}',
                     f'{MF} {R("a",O[y],16)}, {R("v",VB[vb]+4,4)}, {R("v",P[y]+4,4)}, {R("a",O[y],16)}', f'{MF} {R("a",Lr[y],16)}, a[80:83], {R("v",P[y]+4,4)}, {R("a",Lr[y],16)}']
    def mx16(y,d,init):
        L=[f'v_max3_f32 v{d}, v{S[y]}, v{S[y]+1}, '+(f'v{S[y]+1}' if init else f'v{d}')]
        L+=[f'v_max3_f32 v{d}, v{S[y]+2*i}, v{S[y]+2*i+1}, v{d}' for i in range(1,8)]
        return L
    def setC():
        for y in range(2):
            A(f'v_mov_b32 v9, v{7+y}\n v_permlane32_swap_b32 v{7+y}, v9\n v_max_f32 v{7+y}, v{7+y}, v9')
            for i in range(16): A(f'v_sub_f32 v{C[y]+i}, 0, v{7+y}')
    A('L_amain:')
    start()
    for i in range(64): A(f'v_accvgpr_write_b32 a{i}, 0')
    for i in range(8): A(f'v_mov_b32 v{P[1]+i}, 0\n v_mov_b32 v{VB[1]+i}, 0')
    A('s_waitcnt vmcnt(8)\n s_barrier')
    A(f'ds_read_b128 v[64:67], v1\n ds_read_b128 v[68:71], v1 offset:1024\n s_waitcnt lgkmcnt(0)\n s_cmp_lg_u32 s38, 0\n s_cbranch_scc1 L_am1')
    a,b=qk(0,0,'0'),qk(1,0,'0')
    A('\n'.join([a[0],b[0],a[1],b[1]]+mx16(0,7,True)+mx16(1,8,True))); setC()
    A('L_am1:'); A('\n'.join(qk(0,0,R('v',C[0],16))))
    A('L_aloop:'); chunk_top('m')
    A('s_mov_b32 s28, 0\nL_ain:')
    def half(x, M, pre):
        s=S[x]; e=lambda i: f'v_exp_f32 v{s+i}, v{s+i}'; c=lambda i: f'v_cvt_pk_bf16_f32 v{P[x]+i}, v{s+2*i}, v{s+2*i+1}'
        G=[[e(0),e(1),e(2)]+pre,[e(3),e(4),e(5),c(0)],[e(6),e(7),e(8),c(1)],[e(9),e(10),c(2),e(11),c(3)],[e(12),e(13),c(4),e(14)],[e(15),c(5),c(6),c(7)]]
        for m,g in zip(M,G): A(m); A('\n'.join(g))
    for u in range(2):
        pre=['v_add_u32 v10, 4096, v1','v_and_b32 v10, 0x1ffff, v10',
             f'ds_read_b128 {R("v",VB[u],4)}, v1 offset:2048', f'ds_read_b128 {R("v",VB[u]+4,4)}, v1 offset:3072',
             f'ds_read_b128 {R("v",KB[u^1],4)}, v10', f'ds_read_b128 {R("v",KB[u^1]+4,4)}, v10 offset:1024', 'v_mov_b32 v1, v10']
        half(0, qk(1,u,R('v',C[1],16))+pv(1,u^1), pre)
        A('s_waitcnt lgkmcnt(0)')
        half(1, qk(0,u^1,R('v',C[0],16))+pv(0,u), [])
    A('''s_add_u32 s28, s28, 1
 s_cmp_lt_u32 s28, 4
 s_cbranch_scc1 L_ain
 s_add_u32 s29, s29, 1
 s_cmp_lt_u32 s29, 8
 s_cbranch_scc1 L_aloop''')
    A('\n'.join(pv(1,1)))
    A(f'''v_accvgpr_read_b32 v7, a{Lr[0]}
 v_accvgpr_read_b32 v8, a{Lr[1]}
 s_cmp_lg_u32 s38, 0
 s_cbranch_scc1 L_afin
 v_add_f32 v10, v7, v8
 v_cmp_nge_f32 vcc, {f2u(2.0**40)}, v10
 v_mov_b32 v11, {LCTL+16}
 v_mov_b32 v12, 1
 s_cmp_lg_u32 s14, 0
 s_cbranch_scc1 L_af0
 v_mov_b32 v13, 0
 ds_write_b32 v11, v13
 s_waitcnt lgkmcnt(0)
L_af0:
 s_barrier
 s_cbranch_vccz L_af1
 ds_write_b32 v11, v12
 s_waitcnt lgkmcnt(0)
L_af1:
 s_barrier
 ds_read_b32 v12, v11
 s_waitcnt lgkmcnt(0)
 v_readfirstlane_b32 s33, v12
 s_cmp_eq_u32 s33, 0
 s_cbranch_scc1 L_afin
''')
    start()
    A('v_mov_b32 v7, 0xff800000\n v_mov_b32 v8, 0xff800000\nL_axl:'); chunk_top('x')
    A('s_mov_b32 s28, 0\nL_axi:\n ds_read_b128 v[64:67], v1\n ds_read_b128 v[68:71], v1 offset:1024\n v_add_u32 v1, 4096, v1\n v_and_b32 v1, 0x1ffff, v1\n s_waitcnt lgkmcnt(0)')
    A('\n'.join([a[0],b[0],a[1],b[1]]+mx16(0,7,False)+mx16(1,8,False)))
    A('''s_add_u32 s28, s28, 1
 s_cmp_lt_u32 s28, 8
 s_cbranch_scc1 L_axi
 s_add_u32 s29, s29, 1
 s_cmp_lt_u32 s29, 8
 s_cbranch_scc1 L_axl''')
    setC()
    A(f'''s_mov_b32 s38, 1
 s_barrier
 s_branch L_amain
L_afin:
 v_rcp_f32 v7, v7
 v_rcp_f32 v8, v8
 s_mul_i32 s27, s24, {OPS}
 s_lshl_b32 s33, s26, 12
 s_add_u32 s27, s27, s33
 s_add_u32 s27, s27, {OP}
 v_mul_f32 v7, v7, v5
 v_mul_f32 v8, v8, v5''')
    for i in range(32): A(f'v_accvgpr_read_b32 v{16+i}, a{i}')
    for i in range(32): A(f'v_mul_f32 v{16+i}, v{16+i}, v{7+i//16}')
    for i in range(16): A(f'v_cvt_pk_bf16_f32 v{48+i}, v{16+2*i}, v{17+2*i}')
    for j in range(4): A(f'buffer_store_dwordx4 {R("v",48+4*j,4)}, v15, s[4:7], s27 offen offset:{1024*j} sc1')
    A(f'''s_lshr_b32 s36, s24, 2
 s_lshl_b32 s36, s36, 7
 s_add_u32 s36, s36, {FO}
 s_branch L_next''')

def sx(A):
    SC=f2u(128**-0.5*LOG2E)
    A(f'''L_sx:
 s_lshr_b32 s33, s24, 1
 s_lshl_b32 s36, s12, 4
 s_add_u32 s36, s36, s33
 s_lshl_b32 s36, s36, 7
 s_add_u32 s36, s36, {FKV}
 v_mov_b32 v2, s36
 v_mov_b32 v3, 8
 s_add_u32 s36, s36, 8
 s_mov_b32 s39, 4
 s_lshr_b32 s33, s14, 2
 s_lshl_b32 s25, s24, 1
 s_add_u32 s25, s25, s33            ; seg
 s_and_b32 s33, s14, 3
 s_lshl_b32 s26, s12, 2
 s_add_u32 s26, s26, s33            ; head
 s_lshl_b32 s27, s25, 18
 s_lshl_b32 s33, s26, 13
 s_add_u32 s27, s27, s33            ; F offset
 v_lshlrev_b32 v15, 4, v0
 v_lshrrev_b32 v5, 5, v0
 v_and_b32 v7, 31, v0
 v_lshlrev_b32 v9, 3, v7
 v_lshlrev_b32 v8, 2, v5
 v_sub_u32 v7, v7, v8               ; q - 4h
 v_and_b32 v10, 15, v0
 v_lshlrev_b32 v10, 4, v10
 v_lshl_add_u32 v10, v5, 8, v10
 v_bfe_u32 v11, v0, 4, 1
 v_lshl_add_u32 v10, v11, 10, v10
 v_mov_b32 v12, 0xff800000
 s_mov_b32 s35, {SC}''')
    A(f'''s_or_b32 s33, s14, s63
 s_cbranch_scc1 L_sx1
 v_mov_b32 v4, 128
L_sx0:
 s_sleep 8
 global_load_dword v1, v4, s[16:17] sc1
 s_waitcnt vmcnt(0)
 {GUARD[0].replace('LBL','L_sx1')}
 v_cmp_ne_u32 vcc, 128, v1
 s_cbranch_vccnz L_sx0
L_sx1:''')
    waitflags(A,'B','1')
    for hh in range(2):
        A(f's_add_u32 s33, s27, {KX+4096*hh}\n s_add_u32 s34, s27, {QX+4096*hh}')
        for i in range(4):
            A(f'buffer_load_dwordx4 {R("v",64+16*hh+4*i,4)}, v15, s[4:7], s33 offen offset:{1024*i} sc1')
            A(f'buffer_load_dwordx4 {R("a",16*hh+4*i,4)}, v15, s[4:7], s34 offen offset:{1024*i} sc1')
    A(f's_add_u32 s27, s27, {EX}')
    for i in range(8): A(f's_waitcnt vmcnt({14-2*i})\n {MF} v[16:31], {R("v",64+4*i,4)}, {R("a",4*i,4)}, {"0" if i==0 else "v[16:31]"}')
    for i in range(16):
        A(f'v_cmp_le_i32 vcc, {8*(i>>2)+(i&3)}, v7\n v_cndmask_b32 v{16+i}, v12, v{16+i}, vcc')
    A('v_max3_f32 v13, v16, v17, v18')
    for i in range(19,31,2): A(f'v_max3_f32 v13, v13, v{i}, v{i+1}')
    A('''v_max_f32 v13, v13, v31
 v_mov_b32 v14, v13
 v_permlane32_swap_b32 v13, v14
 v_max_f32 v13, v13, v14
 v_mul_f32 v44, s35, v13''')
    for i in range(16,32): A(f'v_fma_f32 v{i}, v{i}, s35, -v44')
    for i in range(16,32): A(f'v_exp_f32 v{i}, v{i}')
    for i in range(8):
        j=i>>1; A(f'v_cvt_pk_bf16_f32 v{36+4*(j&1)+2*(j>>1)+(i&1)}, v{16+2*i}, v{17+2*i}')
    A('buffer_store_dwordx4 v[36:39], v10, s[4:7], s27 offen sc1\n buffer_store_dwordx4 v[40:43], v10, s[4:7], s27 offen offset:512 sc1')
    for n in (8,4,2,1):
        for i in range(n): A(f'v_add_f32 v{16+i}, v{16+i}, v{16+n+i}')
    A('''v_mov_b32 v17, v16
 v_permlane32_swap_b32 v16, v17
 v_add_f32 v45, v16, v17
 s_mov_b32 exec_hi, 0
 buffer_store_dwordx2 v[44:45], v9, s[4:7], s27 offen offset:2048 sc1
 s_mov_b64 exec, -1
 s_branch L_next''')

def oproj(A, tag, MB, D=5):
    NB=2; RN=D+1; NSL=8
    A(f'''L_op{tag}:
 s_lshl_b32 s33, s24, 5
 s_add_u32 s33, s33, {FO}
 v_mov_b32 v2, s33
 v_mov_b32 v3, 8''')
    srd(A,20,32,0x200000); srd(A,44,104,0x400000)
    waitflags(A,'O'+tag,'1')
    A(f'''v_lshlrev_b32 v15, 4, v0
 v_lshrrev_b32 v4, 3, v0
 v_and_b32 v5, 7, v0
 v_bfe_u32 v6, v0, 4, 1
 v_lshlrev_b32 v6, 2, v6
 v_xor_b32 v5, v5, v6
 v_lshlrev_b32 v1, 11, v4
 v_lshl_add_u32 v1, v5, 4, v1
 v_add_u32 v2, {16384-1024}, v1
 s_lshl_b32 s30, s14, 14
 v_bfe_u32 v4, v0, 2, 2             ; r
 v_lshrrev_b32 v5, 5, v0
 v_lshl_add_u32 v5, v5, 2, v4
 v_lshlrev_b32 v5, 7, v5
 v_and_b32 v6, 1, v0
 v_lshl_add_u32 v5, v6, 3, v5
 v_add_u32 v5, s30, v5
 v_bfe_u32 v6, v0, 4, 1
 v_bfe_u32 v7, v0, 1, 1
 v_lshl_add_u32 v6, v6, 1, v7
 v_lshrrev_b32 v4, 1, v4
 v_lshl_add_u32 v6, v4, 2, v6
 v_lshl_add_u32 v3, v6, 4, v5
 v_xor_b32 v4, 64, v3
 s_mul_i32 s33, s24, {OPS}
 s_add_u32 s33, s33, {OP}
 s_lshl_b32 s34, s14, 13
 s_add_u32 s34, s34, s33            ; o' A part
 s_lshl_b32 s26, s14, 18
 s_add_u32 s26, s26, s25
 s_waitcnt lgkmcnt(0)''')
    for mb in range(1,MB): A(f'v_add_u32 v{7+mb}, {OPS*mb}, v15')
    ov=lambda mb: 'v15' if mb==0 else f'v{7+mb}'
    xr=lambda s,mb: 32+(s%RN)*4*MB+4*mb
    wr=lambda s,nb: 16+(s&1)*8+4*nb
    assert 32+RN*4*MB<=128
    NT=8; PER=NB+MB
    def loads(s):
        w,so,xo = ('s[20:23]','s26','s34')
        L=[f's_add_u32 m0, s30, {(s%NSL)*2048}\n buffer_load_dwordx4 v1, {w}, {so} offen lds', f'buffer_load_dwordx4 v2, {w}, {so} offen offset:1024 lds\n s_add_u32 {so}, {so}, 32768']
        q=s&3
        for mb in range(MB):
            L.append(f'buffer_load_dwordx4 {R("v",xr(s,mb),4)}, {ov(mb)}, s[4:7], {xo} offen offset:{1024*q} sc1' + (f'\n s_add_u32 {xo}, {xo}, 4096' if q==3 and mb==MB-1 else ''))
        return L
    def trs(s): return [f'ds_read_b64_tr_b16 {R("v",wr(s,nb)+2*t,2)}, v{3+nb} offset:{(s%NSL)*2048+1024*t}' for nb in range(NB) for t in range(2)]
    for s in range(D): A('\n'.join(loads(s)))
    A(f's_waitcnt vmcnt({PER*(D-1)+MB})'); A('\n'.join(trs(0)))
    for s in range(NT):
        M=[f'{MF} {R("a",16*(mb*NB+nb),16)}, {R("v",wr(s,nb),4)}, {R("v",xr(s,mb),4)}, {"0" if s==0 else R("a",16*(mb*NB+nb),16)}' for mb in range(MB) for nb in range(NB)]
        infl=max(0,min(D-2,NT-2-s))
        A(f's_waitcnt vmcnt({PER*infl+(MB if s+1<NT else 0)}) lgkmcnt(0)')
        O=(trs(s+1) if s+1<NT else [])+(loads(s+D) if s+D<NT else [])
        A('\n'.join(interleave(M,O)))
    PS=16*1056
    A(f'''s_mul_i32 s33, s14, {PS}
 v_add_u32 v1, s33, v15
 v_and_b32 v4, 7, v0
 v_mul_u32_u24 v2, 1056, v4
 v_lshrrev_b32 v5, 3, v0
 s_lshl_b32 s33, s14, 3
 v_add_u32 v5, s33, v5
 v_and_b32 v6, 31, v5
 v_lshl_add_u32 v2, v6, 4, v2
 s_lshr_b32 s33, s14, 2
 s_mul_i32 s33, s33, {8*1056}
 v_add_u32 v2, s33, v2
 v_add_u32 v3, {4*PS}, v2
 v_lshlrev_b32 v6, 3, v5
 s_lshl_b32 s33, s24, 8
 s_add_u32 s33, s33, {GT}
 buffer_load_dword v112, v6, s[4:7], s33 offen offset:4 sc1
 buffer_load_dword v114, v6, s[4:7], s33 offen offset:516 sc1
 v_lshlrev_b32 v5, 11, v5
 v_lshl_add_u32 v5, v4, 4, v5
 s_lshl_b32 s27, s24, 16
 s_add_u32 s27, s27, s25''')
    for rd in range(MB//2):
        A('s_barrier')
        for b in range(4):
            for i in range(4): A(f'ds_write_b128 v1, {R("a",64*rd+16*b+4*i,4)} offset:{(4*b+i)*1056}')
        A('s_waitcnt lgkmcnt(0)\n s_barrier')
        for p in range(8):
            for h in range(2): A(f'ds_read_b128 {R("v",16+8*p+4*h,4)}, v{2+p//4} offset:{(p&3)*PS+512*h}')
        for p in range(1,8):
            A(f's_waitcnt lgkmcnt({14-2*p})')
            for i in range(8): A(f'v_add_f32 v{(96+8*rd if p==7 else 16)+i}, v{16+i}, v{16+8*p+i}')
    A(f'''s_lshr_b32 s33, s14, 2
 s_add_u32 s24, s24, s33            ; segment
 s_add_u32 s35, s24, 3
 s_lshl_b32 s24, s24, 19
 s_lshl_b32 s33, s25, 5
 s_add_u32 s24, s24, s33
 s_and_b32 s33, s14, 3
 s_lshl_b32 s33, s33, 10
 s_add_u32 s24, s24, s33
 s_add_u32 s24, s24, {PO}
 s_add_u32 s33, s25, {FC}
 v_lshl_add_u32 v2, v0, 11, s33
 s_waitcnt vmcnt(0)
 v_lshrrev_b32 v113, 16, v112
 v_lshrrev_b32 v115, 16, v114''')
    tlog(A,'1200',0,TL[0])
    for rd in range(MB//2):
        A(f'''s_mov_b64 exec, 0xff
L_of{rd}:
 buffer_load_dword v1, v2, s[4:7], 0 offen sc1
 s_waitcnt vmcnt(0)
 v_cmp_gt_u32 vcc, s35, v1
 s_cbranch_vccz L_og{rd}
 {GUARD[0].replace('LBL',f'L_og{rd}')}
 v_add_u32 v1, 2, v1
 v_cmp_gt_u32 vcc, s35, v1
 s_sleep 2
 s_cbranch_vccz L_of{rd}
 s_sleep 40
 s_branch L_of{rd}
L_og{rd}:
 s_mov_b64 exec, -1''')
        for p in range(8): A(f's_add_u32 s33, s24, {65536*p}\n buffer_load_dwordx4 {R("v",16+4*p,4)}, v15, s[4:7], s33 offen sc1')
        for p in range(8):
            A(f's_waitcnt vmcnt({7-p})')
            for i in range(8): A(f'v_dot2c_f32_bf16 v{96+8*rd+i}, v{16+4*p+i//2}, v{113+2*rd-(i&1)}')
        for i in range(4): A(f'v_cvt_pk_bf16_f32 v{80+4*rd+i}, v{96+8*rd+2*i}, v{97+8*rd+2*i}')
        A(f'buffer_store_dwordx4 {R("v",80+4*rd,4)}, v5, s[44:47], s27 offen\n s_add_u32 s27, s27, {64*2048}\n s_add_u32 s24, s24, {2<<19}\n s_add_u32 s35, s35, 2')
    A('s_mov_b32 s37, 0\n s_branch L_next')
```

```python
from asmlib import *
import struct
XP=0x5000000; MR=0x080000; SP=0x100000; VP=0x180000
EX=0x4000000; PO=0x8000000; SQ=0x182000; KX=0x1000000; VF=0x2000000; QX=0x3000000
H3=0x210000; FL=0x220000; FC=FL+0x8000
TS=0x400000
RGW=3584; RT=14336; LFLAG=24576; RINV=LFLAG+128; SELA=25600; POL=32768; RTS=135168
SCALE_B = 128**-0.5 * 1.4426950408889634
def f2u(f): return struct.unpack('<I', struct.pack('<f', f))[0]
def wfrag(f): return f'a[{8*f}:{8*f+7}]' if f < 16 else f'v[{64+8*(f-16)}:{64+8*(f-16)+7}]'
def wreg(f, i): return f'a{8*f+i}' if f < 16 else f'v{64+8*(f-16)+i}'

def gen_chain(A, opt):
    A0 = A
    A = lambda t: A0(t.replace('PONT', opt.get('pont','')))
    full = opt.get('full', False)
    XIT = 'L_cend' if full else 'L_end'
    guard = opt.get('guard', True)
    rt = opt.get('rt', False)
    dev = bool(rt)
    MT = 's_memrealtime' if opt.get('real', True) else 's_memtime'
    LS = opt.get('ls', '')
    CNT = {'h':88,'x':89,'r':90,'v':89,'s':90}
    def G(lbl):
        if dev and lbl in CNT: A(f's_add_u32 s{CNT[lbl]}, s{CNT[lbl]}, 1')
        if guard: A(f's_add_u32 s60, s60, 1\n s_cmp_gt_u32 s60, 0x400000\n s_cbranch_scc1 L_end')
    def stamp(k):
        if dev: A(f'{MT} s[{64+2*k}:{65+2*k}]')
    def lgkm(n): A(f's_waitcnt lgkmcnt({n})')
    def flush_ts(n, base, t):
        if not dev: return
        A(f's_waitcnt lgkmcnt(0)\n s_lshl_b32 s61, s14, 11\n s_lshl_b32 s80, s15, 5\n s_add_u32 s61, s61, s80\n s_add_u32 s61, s61, {RTS}\n v_mov_b32 v{base-1}, s61')
        for k in range(n): A(f'v_mov_b32 v{base}, s{64+2*k}\n ds_write_b32 v{base-1}, v{base} offset:{4*k}')
        A(f's_lshl_b32 s89, s89, 8\n s_lshl_b32 s90, s90, 16\n s_add_u32 s88, s88, s89\n s_add_u32 s88, s88, s90\n v_mov_b32 v{base}, s88\n ds_write_b32 v{base-1}, v{base} offset:28\n s_mov_b32 s88, 0\n s_mov_b32 s89, 0\n s_mov_b32 s90, 0')
        A(f's_cmp_eq_u32 s15, 62\n s_cbranch_scc0 L_ts2{t}')
        A(f's_lshl_b32 s61, s12, 4\n s_add_u32 s61, s61, s13\n s_lshl_b32 s61, s61, 3\n s_add_u32 s61, s61, s14\n s_lshl_b32 s61, s61, 11\n s_add_u32 s61, s61, {TS}')
        A(f's_lshl_b32 s80, s14, 11\n s_add_u32 s80, s80, {RTS}\n v_lshlrev_b32 v{base-2}, 2, v0\n v_add_u32 v{base-1}, s80, v{base-2}')
        for k in range(8): A(f'ds_read_b32 v{base}, v{base-1} offset:{256*k}\n s_waitcnt lgkmcnt(0)\n buffer_store_dword v{base}, v{base-2}, s[4:7], s61 offen offset:{256*k}\n s_waitcnt vmcnt(0)')
        A(f'L_ts2{t}:')
    A(f'''
L_chain:
 s_mov_b32 s88, 0
 s_mov_b32 s89, 0
 s_mov_b32 s90, 0
 s_mov_b32 s60, 0
 s_mov_b32 s15, 0
 s_lshl_b32 s20, s12, 14         ; g*16K
 v_and_b32 v56, 15, v0           ; n
 v_lshrrev_b32 v57, 4, v0        ; g
 v_mov_b32 v3, 0x4444
 v_mov_b32 v58, 0xeeee
 v_cmp_lt_u32 vcc, 7, v56
 v_cndmask_b32 v3, v3, v58, vcc
 s_and_b32 s21, s14, 3
 s_mov_b32 s40, 0x3f80
 s_mov_b32 s41, 0x3f800000
 s_mov_b32 s42, 0x05040100
 s_mov_b32 s43, 0x07060302
 s_mov_b32 s44, -2
 v_mov_b32 v59, 0
 v_mov_b32 v63, 0
 s_mov_b32 s51, 0
 s_cmp_ge_u32 s14, 4
 s_cbranch_scc1 L_T
''')
    A(f'''
 s_load_dwordx2 s[8:9], s[0:1], 56
 s_load_dwordx2 s[24:25], s[0:1], 64
 s_load_dwordx2 s[28:29], s[0:1], 72
 s_load_dwordx2 s[32:33], s[0:1], 48
 s_mov_b32 s10, 0x800000
 s_mov_b32 s11, 0x20000
 s_mov_b32 s26, 0x800000
 s_mov_b32 s27, 0x20000
 s_mov_b32 s30, 0x800000
 s_mov_b32 s31, 0x20000
 s_mov_b32 s34, 0x4000
 s_mov_b32 s35, 0x20000
 s_lshl_b32 s23, s12, 4
 s_add_u32 s23, s23, s13
 s_lshl_b32 s23, s23, 6
 s_lshr_b32 s18, s12, 1          ; XCD
 s_and_b32 s19, s12, 1           ; a
 v_mov_b32 v8, v56
 v_mov_b32 v9, v57
 v_lshlrev_b32 v7, 4, v0         ; lane*16
 s_lshl_b32 s22, s13, 10
 s_and_b32 s36, s22, 0x2000
 s_add_u32 s22, s22, s36
 s_add_u32 s22, s22, {XP}
 s_lshl_b32 s36, s12, 15
 s_add_u32 s36, s36, s22
 s_lshl_b32 s37, s14, 8
 s_add_u32 s36, s36, s37
 v_lshl_add_u32 v62, v8, 4, s36
 s_lshl_b32 s36, s19, 9
 s_lshl_b32 s37, s14, 7
 s_add_u32 s37, s36, s37
 s_add_u32 s36, s37, s22
 v_lshrrev_b32 v12, 3, v0
 v_lshlrev_b32 v1, 15, v12
 v_and_b32 v12, 7, v0
 v_lshl_add_u32 v1, v12, 4, v1
 v_add_u32 v1, s36, v1
 v_add_u32 v13, 0x200000, v1
 v_cmp_eq_u32 vcc, s18, v9
 v_cndmask_b32 v1, v1, v13, vcc
 s_lshl_b32 s38, s18, 14
 s_add_u32 s38, s38, {MR}
 s_lshl_b32 s36, s13, 10
 s_add_u32 s36, s36, s37
 s_add_u32 s36, s36, s38
 v_lshlrev_b32 v2, 2, v12
 v_lshl_add_u32 v2, v9, 5, v2
 v_add_u32 v2, s36, v2
 s_lshl_b32 s36, s14, 12
 s_add_u32 s48, s36, s38
 ; row u = 2g + ((n>>2)&1)
 v_bfe_u32 v12, v0, 2, 1
 v_lshl_add_u32 v12, v9, 1, v12
 v_lshlrev_b32 v61, 4, v12
 v_add_u32 v61, {RINV}, v61
 v_mul_u32_u24 v6, 320, v12
 v_and_b32 v13, 3, v0
 v_lshl_add_u32 v6, v13, 4, v6
 v_bfe_u32 v14, v0, 3, 1
 v_lshl_add_u32 v6, v14, 3, v6
 s_lshl_b32 s36, s14, 6
 s_add_u32 s36, s36, {RT}
 v_add_u32 v6, s36, v6
 v_lshlrev_b32 v11, 11, v12
 v_lshl_add_u32 v11, v13, 3, v11
 s_lshl_b32 s36, s13, 7
 s_lshr_b32 s38, s37, 8
 s_lshl_b32 s38, s38, 5
 s_add_u32 s36, s36, s38
 s_and_b32 s38, s14, 1
 s_lshl_b32 s38, s38, 2
 s_add_u32 s36, s36, s38
 v_add_u32 v11, s36, v11
 v_and_b32 v12, 1, v9
 v_mul_u32_u24 v4, 1664, v12
 v_lshl_add_u32 v4, v8, 3, v4
 s_mul_i32 s36, s14, {RGW}
 v_add_u32 v4, s36, v4
 v_lshrrev_b32 v12, 1, v9
 v_lshl_add_u32 v5, v12, 2, v4
 v_add_u32 v5, 288, v5
 v_mul_u32_u24 v12, 144, v12
 v_add_u32 v4, v4, v12
 v_lshlrev_b32 v10, 16, v9
 v_lshl_add_u32 v10, v8, 2, v10
 v_add_u32 v10, s23, v10
 v_mov_b32 v20, -1
 v_mov_b32 v21, -1
 v_mov_b32 v22, -1
 v_mov_b32 v23, -1
 v_lshl_add_u32 v12, v9, 18, v62''')
    for k in range(4):
        A(f's_mov_b32 s36, {(k&1)*8192+(k>>1)*0x200000}\n buffer_store_dwordx4 v[20:23], v12, s[4:7], s36 offen {"sc1" if k<2 else LS}')
    for sl in range(4):
        A(f's_mov_b32 s36, {sl<<17}\n buffer_store_dword v20, v2, s[4:7], s36 offen {LS}')
    A(f'''
 s_mov_b32 s52, 0x00ff00ff
 s_mov_b32 s53, 0x00ff00ff
 s_mov_b32 s54, 0
 s_mov_b32 s55, 0x00ff00ff
 s_lshl_b32 s58, s23, 6
 s_lshl_b32 s36, s14, 10
 s_add_u32 s58, s58, s36
 s_add_u32 s58, s58, {PO-0x80000}
 v_lshrrev_b32 v12, 3, v0
 v_mul_u32_u24 v57, 272, v12
 v_and_b32 v12, 7, v0
 v_lshl_add_u32 v57, v12, 5, v57
 s_mul_i32 s36, s14, {8*272}
 s_add_u32 s36, s36, {POL+0x10000}
 v_add_u32 v57, s36, v57
 s_cmp_eq_u32 s14, 0
 s_cbranch_scc1 L_G0i
 s_cmp_eq_u32 s14, 1
 s_cbranch_scc1 L_G1i
 s_cmp_eq_u32 s14, 3
 s_cbranch_scc1 L_G3i
 s_lshl_b32 s36, s12, 11
 s_lshl_b32 s37, s13, 2
 s_add_u32 s36, s36, s37
 s_add_u32 s36, s36, {H3}
 v_lshlrev_b32 v59, 7, v0
 v_add_u32 v59, s36, v59
 ; selection matrix for the partial sum
 v_mov_b32 v16, s40
 v_mov_b32 v17, s41''')
    for r in range(4):
        A(f'v_cmp_eq_u32 vcc, {4*r}, v8\n v_cndmask_b32 v{12+r}, 0, v16, vcc\n v_cmp_eq_u32 vcc, {4*r+1}, v8\n v_cndmask_b32 v{12+r}, v{12+r}, v17, vcc')
    A(f'''ds_write_b128 v7, v[12:15] offset:{SELA}
 s_lshl_b32 s51, s23, 1
 s_add_u32 s51, s51, {FC}
 s_lshl_b32 s36, s23, 5
 s_add_u32 s36, s36, {KX}
 v_lshl_add_u32 v58, v8, 7, s36
 v_lshl_add_u32 v58, v9, 24, v58
 s_and_b32 s37, s13, 3
 s_mul_i32 s37, s37, 5
 v_add_u32 v12, s37, v8
 v_min_u32 v12, 17, v12
 s_and_b32 s36, s36, 0xffffe000
 s_add_u32 s36, s36, {EX-KX}
 v_lshl_add_u32 v12, v12, 7, s36
 v_cmp_lt_u32 vcc, 47, v0
 v_cndmask_b32 v58, v58, v12, vcc
 s_branch L_Gw
L_G3i:
 v_and_b32 v12, 3, v8
 v_lshrrev_b32 v13, 3, v8
 v_lshl_add_u32 v12, v13, 2, v12
 v_mul_u32_u24 v63, 416, v12
 v_lshl_add_u32 v63, v9, 5, v63
 v_add_u32 v63, 144, v63
 v_lshlrev_b32 v58, 9, v9
 v_lshl_add_u32 v58, v8, 4, v58
 s_lshl_b32 s36, s23, 5
 s_add_u32 s36, s36, {QX}
 v_add_u32 v58, s36, v58
 s_lshl_b32 s36, s13, 9
 s_add_u32 s36, s36, s20
 s_add_u32 s36, s36, {SQ}
 v_lshlrev_b32 v56, 5, v8
 v_lshl_add_u32 v56, v9, 3, v56
 v_add_u32 v56, s36, v56
 s_mov_b32 s52, 0xffff0000
 s_mov_b32 s53, 0xffff0000
 s_branch L_G1r
L_G1i:
 v_bfe_u32 v12, v0, 1, 2         ; rho&3
 v_bfe_u32 v13, v0, 4, 1         ; rho>>3
 v_lshl_add_u32 v12, v13, 2, v12 ; key
 v_mul_u32_u24 v63, 416, v12
 v_lshrrev_b32 v12, 5, v0        ; g'
 v_lshl_add_u32 v63, v12, 6, v63
 v_and_b32 v12, 1, v0
 v_lshl_add_u32 v63, v12, 5, v63
 v_bfe_u32 v12, v0, 3, 1         ; half
 v_lshl_add_u32 v63, v12, 3, v63
 v_add_u32 v63, 288, v63
 v_add_u32 v58, 16, v63
 v_lshlrev_b32 v12, 3, v0
 s_lshl_b32 s36, s13, 9
 s_add_u32 s36, s36, s20
 s_add_u32 s36, s36, {VP}
 v_add_u32 v56, s36, v12
L_G1r:''')
    for sl in range(4):
        A(f's_mov_b32 s36, {sl<<17}\n buffer_store_dwordx2 v[20:21], v56, s[4:7], s36 offen {LS}')
    A(f'''
 s_branch L_Gw
L_G0i:
 v_and_b32 v12, 7, v8
 v_bfe_u32 v13, v8, 1, 1
 v_bfe_u32 v14, v8, 2, 1
 v_and_b32 v15, 1, v8
 v_lshl_add_u32 v15, v13, 2, v15   ; 4r1 + r0
 v_lshl_add_u32 v16, v14, 1, v15
 v_cmp_lt_u32 vcc, 7, v8
 v_cndmask_b32 v16, v12, v16, vcc
 v_mul_u32_u24 v63, 416, v16
 v_lshrrev_b32 v13, 3, v8
 v_mul_u32_u24 v17, 144, v13
 v_add_u32 v63, v63, v17
 v_lshl_add_u32 v63, v9, 5, v63
 ; key(b=0) = 16r2 + 4r1 + 2r3 + r0
 v_lshl_add_u32 v15, v14, 4, v15
 v_lshl_add_u32 v15, v13, 1, v15
 v_lshlrev_b32 v17, 9, v9
 v_lshl_add_u32 v58, v15, 4, v17
 s_lshl_b32 s36, s23, 5
 s_add_u32 s36, s36, {KX}
 v_add_u32 v58, s36, v58
 s_lshl_b32 s36, s13, 10
 s_add_u32 s36, s36, s20
 s_add_u32 s36, s36, {SP}
 v_and_b32 v13, 1, v9
 v_lshrrev_b32 v14, 1, v9
 v_lshlrev_b32 v56, 8, v13
 v_lshl_add_u32 v56, v14, 7, v56
 v_lshl_add_u32 v56, v12, 4, v56
 v_add_u32 v56, s36, v56
 v_lshlrev_b32 v59, 6, v13
 v_lshl_add_u32 v59, v12, 3, v59
 v_add_u32 v59, s36, v59
''')
    for sl in range(4):
        A(f's_add_u32 s37, s36, {sl<<17}\n buffer_store_dwordx4 v[20:23], v7, s[4:7], s37 offen {LS}')
    A(f'''
L_Gw:
 s_waitcnt vmcnt(0) lgkmcnt(0)
 s_barrier
 s_lshl_b32 s36, s14, 21         ; 256*w rows * 8192
''')
    srd = ['s[8:11]','s[24:27]','s[28:31]']
    blk_of = lambda t, b: [[0,2],[1,3],[4,5]][t][b]
    groups = [(j,t) for j in range(4) for t in range(3)]
    def issue(j,t):
        for H in range(2):
            for e in range(8):
                f = j*6 + blk_of(t, e&1)
                A(f's_add_u32 s37, s36, {(64*j+32*H+e)*8192}\n buffer_load_dword {wreg(f, H*4+e//2)}, v10, {srd[t]}, s37 offen {opt.get("wnt","nt")}')
    def fix(j,t):
        f0 = j*6+blk_of(t,0); f1 = j*6+blk_of(t,1)
        for p in range(8):
            a, b = wreg(f0,p), wreg(f1,p)
            ra, rb = a, b
            if a[0]=='a': A(f'v_accvgpr_read_b32 v12, {a}'); ra='v12'
            if b[0]=='a': A(f'v_accvgpr_read_b32 v13, {b}'); rb='v13'
            A(f'v_perm_b32 v14, {rb}, {ra}, s42\n v_perm_b32 v15, {rb}, {ra}, s43')
            A(f'v_accvgpr_write_b32 {a}, v14' if a[0]=='a' else f'v_mov_b32 {a}, v14')
            A(f'v_accvgpr_write_b32 {b}, v15' if b[0]=='a' else f'v_mov_b32 {b}, v15')
    A('buffer_load_dword v60, v11, s[32:35], 0 offen')
    for gi in range(3): issue(*groups[gi])
    for gi in range(12):
        rem = min(3, 12-gi) - 1
        A(f's_waitcnt vmcnt({16*rem})')
        if gi+3 < 12: issue(*groups[gi+3])
        fix(*groups[gi])
    for r in range(24,48): A(f'v_mov_b32 v{r}, 0')
    PW = opt.get('pw', 1)
    def pored(store):
        for h in range(4): A(f'ds_read_b128 v[{8+8*h}:{11+8*h}], v57 offset:{8704*h}\n ds_read_b128 v[{12+8*h}:{15+8*h}], v57 offset:{8704*h+16}')
        A('v_xor_b32 v57, 0x10000, v57')
        lgkm(4)
        for i in range(8): A(f'v_add_f32 v{8+i}, v{8+i}, v{16+i}')
        lgkm(0)
        for i in range(8): A(f'v_add_f32 v{24+i}, v{24+i}, v{32+i}')
        r = 12 if store else 40
        for i in range(8): A(f'v_add_f32 v{16+i}, v{8+i}, v{24+i}')
        for i in range(4): A(f'v_cvt_pk_bf16_f32 v{r+i}, v{16+2*i}, v{17+2*i}')
        if store: A('buffer_store_dwordx4 v[12:15], v7, s[4:7], s58 offen sc1 PONT\n s_add_u32 s58, s58, 0x80000')
    A(f'''
 v_min_u32 v60, s44, v60
 s_mov_b32 s45, 0
 s_mov_b32 s46, s48
 s_waitcnt vmcnt(0)''')
    tlog(A,'2001',0,opt.get('tl'))
    A(f'''s_barrier
 s_barrier
 v_mov_b32 v12, {LFLAG}
 ds_read_b32 v12, v12 offset:32
 s_waitcnt lgkmcnt(0)
 v_readfirstlane_b32 s59, v12
 s_setprio 2
 s_cmp_lg_u32 s14, 0
 s_cbranch_scc1 L_Gq0
 buffer_load_dwordx4 v[48:51], v58, s[4:7], 0 offen sc1
 buffer_load_dwordx4 v[52:55], v58, s[4:7], 0 offen offset:128 sc1
 s_branch L_Gpub
L_Gq0:
 s_cmp_lg_u32 s14, 3
 s_cbranch_scc1 L_Gpub
 buffer_load_dwordx4 v[48:51], v58, s[4:7], 0 offen sc1
 buffer_load_dwordx4 v[52:55], v58, s[4:7], 0 offen offset:256 sc1
 s_branch L_Gpub
L_Gloop:
 ds_read2st64_b64 v[8:11], v6 offset0:0 offset1:5
 ds_read_b128 v[16:19], v61
 ds_read2st64_b64 v[12:15], v6 offset0:10 offset1:15''')
    stamp(0)
    lgkm(1)
    A('''v_mul_f32 v8, v8, v16
 v_mul_f32 v9, v9, v16
 v_fmac_f32 v8, v10, v17
 v_fmac_f32 v9, v11, v17''')
    lgkm(0)
    A(f'''v_fmac_f32 v8, v12, v18
 v_fmac_f32 v9, v13, v18
 v_fmac_f32 v8, v14, v19
 v_fmac_f32 v9, v15, v19
 v_cvt_pk_bf16_f32 v8, v8, v9
 v_min_u32 v8, s44, v8
 v_permlane16_swap_b32 v8, v9
 v_permlane32_swap_b32 v8, v10
 v_permlane32_swap_b32 v9, v11
 s_mov_b64 exec, 0xffff
 buffer_store_dwordx4 v[8:11], v62, s[4:7], s47 offen sc1
 buffer_store_dwordx4 v[8:11], v62, s[4:7], s39 offen {LS}
 s_mov_b64 exec, -1''')
    stamp(1)
    if PW==1: pored(True)
    A(f'ds_read_b128 v[20:23], v7 offset:{SELA}')
    if not opt.get('zearly'):
        for r in range(24,48): A(f'v_mov_b32 v{r}, 0')
    for k in range(opt.get('gdl',0)): A('ds_read_b32 v14, v6\n s_waitcnt lgkmcnt(0)')
    A('s_waitcnt lgkmcnt(0)')
    stamp(2)
    A('L_Gx:\n buffer_load_dwordx4 v[16:19], v1, s[4:7], s47 offen sc1\n s_mov_b64 exec, -1')
    G('x')
    A(f'''s_waitcnt vmcnt(0)
 v_mfma_f32_16x16x32_bf16 v[8:11], v[20:23], v[16:19], 0
 v_cmp_eq_u32 vcc, -1, v16
 s_cbranch_vccnz L_Gxr
 v_add_f32_dpp v8, v8, v8 row_ror:8 row_mask:0xf bank_mask:0xf
 v_add_f32_dpp v9, v9, v9 row_ror:8 row_mask:0xf bank_mask:0xf
 v_cvt_pk_bf16_f32 v60, v8, v9
 v_min_u32 v60, s44, v60
L_Gpub:
 buffer_store_dword v60, v2, s[4:7], s45 offen {LS}''')
    acc = lambda b: f'v[{24+4*b}:{27+4*b}]'
    gl = lambda j: f'buffer_load_dwordx4 v[{8+4*j}:{11+4*j}], v7, s[4:7], s46 offen offset:{1024*j} sc1'
    smf = lambda j, b: f'v_smfmac_f32_16x16x64_bf16 {acc(b)}, v[{8+4*j}:{11+4*j}], {wfrag(6*j+b)}, v3'
    if opt.get('w2'): A('s_waitcnt vmcnt(0)')
    for k in range(opt.get('wdl',0)): A('ds_read_b32 v14, v6\n s_waitcnt lgkmcnt(0)')
    for j in range(4): A(gl(j))
    stamp(3)
    A('s_mov_b32 s56, 15')
    def blk(k, r, fast):
        nx = lambda rr: 'L_Gqd' if rr == 0 else f'L_R{(k+1)&3}{rr}'
        if not fast:
            A(f'L_R{k}{r}:')
            if r < 4: A(f's_bitcmp1_b32 s56, {k}\n s_cbranch_scc0 {nx(r)}')
        A(f's_waitcnt vmcnt({r-1})\n v_cmp_eq_u32 vcc, -1, v{8+4*k}\n s_cbranch_vccnz L_F{k}{r}')
        for b in range(4): A(smf(k,b))
        if r > 1: A(f's_bitset0_b32 s56, {k}')
        if not fast:
            A(f's_branch {nx(r-1)}\nL_F{k}{r}:\n s_mov_b64 exec, vcc\n {gl(k)}\n s_mov_b64 exec, -1')
            G('r')
            A(f's_branch {f"L_R{k}1" if r == 1 else nx(r)}')
    for k in range(4): blk(k, 4-k, True)
    A('L_Gqd:')
    stamp(4)
    vs = [smf(j,b) for j in range(4) for b in (4,5)]
    VE = opt.get('ve', 2)
    A('\n'.join(vs[:VE]))
    for i in range(4): A(f'v_permlane32_swap_b32 v{24+i}, v{28+i}')
    for i in (0,2,1,3): A(f'v_add_f32 v{24+2*i}, v{24+i}, v{28+i}')
    for i in range(4): A(f'v_permlane32_swap_b32 v{32+i}, v{36+i}')
    for i in range(2): A(f'v_add_f32 v{25+2*i}, v{32+i}, v{36+i}')
    A('ds_write2_b64 v4, v[24:25], v[26:27] offset0:0 offset1:52')
    for i in range(2,4): A(f'v_add_f32 v{25+2*i}, v{32+i}, v{36+i}')
    A('ds_write2_b64 v4, v[28:29], v[30:31] offset0:104 offset1:156')
    VL = opt.get('vl', 8)
    A('\n'.join(vs[VE:VL]))
    A(f'''s_waitcnt lgkmcnt(0)
 s_barrier                       ; barrier G
 s_cmp_lg_u32 s14, 0
 s_cbranch_scc1 L_G123''')
    def vfold(a,b,m=True):
        if m: A('\n'.join(vs[VL:]))
        for i in range(4): A(f'v_permlane32_swap_b32 v{40+i}, v{44+i}')
        for i in range(4): A(f'v_add_f32 v{40+i}, v{40+i}, v{44+i}\n ds_write_b32 v5, v{40+i} offset:{416*i}')
        A(f'v_mov_b32 v{a}, {LFLAG+16}\n v_mov_b32 v{b}, 1\n s_mov_b64 exec, 1\n ds_add_u32 v{a}, v{b}\n s_mov_b64 exec, -1')
    for w in (2,3,0,1):
        if w==0: A('\n'.join(vs[VL:]))
        A(f'ds_read_b128 v[{8+8*w}:{11+8*w}], v63 offset:{RGW*w}\n ds_read_b128 v[{12+8*w}:{15+8*w}], v63 offset:{RGW*w+16}')
    stamp(5)
    vfold(44,45,False)
    lgkm(9)
    for i in range(8): A(f'v_add_f32 v{24+i}, v{24+i}, v{32+i}')
    lgkm(5)
    for i in range(8): A(f'v_add_f32 v{8+i}, v{8+i}, v{16+i}')
    for i in range(4): A(f'v_add_f32 v{8+2*i}, v{8+2*i}, v{24+2*i}\n v_add_f32 v{9+2*i}, v{9+2*i}, v{25+2*i}\n v_cvt_pk_bf16_f32 v{40+i}, v{8+2*i}, v{9+2*i}')
    A(f'''v_mfma_f32_16x16x32_bf16 v[8:11], v[48:51], v[40:43], 0
 v_mfma_f32_16x16x32_bf16 v[12:15], v[52:55], v[40:43], 0
 v_mfma_f32_16x16x32_bf16 v[44:47], v[40:43], v[40:43], 0
 s_mov_b64 exec, s[52:53]
 v_cvt_pk_bf16_f32 v16, v8, v9
 v_cvt_pk_bf16_f32 v17, v10, v11
 v_min_u32 v16, s44, v16
 v_cvt_pk_bf16_f32 v18, v12, v13
 v_cvt_pk_bf16_f32 v19, v14, v15
 buffer_store_dwordx4 v[16:19], v56, s[4:7], s45 offen {LS}
 s_mov_b64 exec, s[54:55]
 v_cvt_pk_bf16_f32 v20, v44, v45
 v_cvt_pk_bf16_f32 v21, v46, v47
 v_min_u32 v20, s44, v20
 buffer_store_dwordx2 v[20:21], v59, s[4:7], s45 offen offset:512 {LS}
 s_mov_b64 exec, -1''')
    stamp(6)
    A(f'''s_branch L_Gtail
L_G123:''')
    stamp(5)
    HINT=f'''s_cmp_lg_u32 s14, 2
 s_cbranch_scc1 L_G13
 s_add_u32 s36, s15, 1
 v_mov_b32 v60, s36
 {'s_waitcnt lgkmcnt(0)' if opt.get('hp',0)==2 else ''}
 s_mov_b64 exec, 0xffff
 buffer_store_dword v60, v59, s[4:7], 0 offen {LS}
 s_mov_b64 exec, -1
L_G13:'''
    if opt.get('hp',0)==0: A(HINT)
    vfold(44,45)
    if opt.get('hp',0)>=1: A(HINT)
    A(f'''s_cmp_eq_u32 s14, 3
 s_cbranch_scc1 L_G3
 s_cmp_lg_u32 s14, 1
 s_cbranch_scc1 L_Gtail
 s_lshl_b32 s36, s15, 2
 s_add_u32 s36, s36, 4
L_Gv:
 ds_read_b32 v45, v44
 ds_read2st64_b64 v[8:11], v63 offset0:0 offset1:7
 ds_read2st64_b64 v[12:15], v58 offset0:0 offset1:7
 ds_read2st64_b64 v[16:19], v63 offset0:14 offset1:21
 ds_read2st64_b64 v[20:23], v58 offset0:14 offset1:21''')
    G('z')
    lgkm(2)
    A('''v_cmp_ne_u32 vcc, s36, v45
 v_add_f32 v8, v8, v10
 v_add_f32 v9, v9, v11
 v_add_f32 v12, v12, v14
 v_add_f32 v13, v13, v15''')
    lgkm(0)
    A(f'''s_cbranch_vccnz L_Gv
 v_add_f32 v16, v16, v18
 v_add_f32 v17, v17, v19
 v_add_f32 v20, v20, v22
 v_add_f32 v21, v21, v23
 v_add_f32 v8, v8, v16
 v_add_f32 v9, v9, v17
 v_add_f32 v12, v12, v20
 v_add_f32 v13, v13, v21
 v_cvt_pk_bf16_f32 v40, v8, v9
 v_cvt_pk_bf16_f32 v41, v12, v13
 v_min_u32 v40, s44, v40
 buffer_store_dwordx2 v[40:41], v56, s[4:7], s45 offen {LS}''')
    stamp(6)
    A(f'''L_Gtail:
 s_setprio 0''')
    if not PW: pored(False)
    flush_ts(7, 22, 'g')
    if opt.get('tl'):
        A('s_and_b32 s94, s15, 3\n s_cbranch_scc1 L_tlx\n s_add_u32 s94, s15, 3000')
        tlog(A,'s94',0,True)
        A('L_tlx:')
    A(f'''s_xor_b32 s37, s45, {2<<17}
 s_add_u32 s15, s15, 1
 s_and_b32 s45, s15, 3
 s_lshl_b32 s47, s45, 18
 s_add_u32 s47, s47, s59
 s_add_u32 s39, s47, 0x200000
 s_lshl_b32 s45, s45, 17
 s_add_u32 s46, s45, s48
 s_xor_b32 s22, s47, {2<<18}
 s_xor_b32 s19, s39, {2<<18}
 s_lshl_b32 s62, s15, 18
 s_add_u32 s18, s15, 1
 s_min_u32 s18, s18, 63
 s_lshl_b32 s18, s18, 18
 v_mov_b32 v20, -1
 v_mov_b32 v21, -1
 v_mov_b32 v22, -1
 v_mov_b32 v23, -1
 v_mov_b32 v12, {LFLAG}''')
    if opt.get('zearly'):
        for r in list(range(24,40))+list(range(44,48)): A(f'v_mov_b32 v{r}, 0')
    A(f'''L_Gf:
 s_sleep {opt.get('gsl',1)}
 ds_read_b128 v[8:11], v12''')
    G('f')
    A(f'''s_waitcnt lgkmcnt(0)
 v_min3_u32 v8, v8, v9, v10
 v_min_u32 v8, v8, v11
 v_cmp_ne_u32 vcc, s15, v8
 s_cbranch_vccnz L_Gf
 {'' if PW else 'buffer_store_dwordx4 v[40:43], v7, s[4:7], s58 offen sc1 PONT'}
 {'' if PW else 's_add_u32 s58, s58, 0x80000'}
 s_mov_b64 exec, 0xffff
 buffer_store_dwordx4 v[20:23], v62, s[4:7], s22 offen sc1
 buffer_store_dwordx4 v[20:23], v62, s[4:7], s19 offen {LS}
 s_cmp_eq_u32 s14, 2
 s_cbranch_scc1 L_Gh2
 s_cmp_lg_u32 s14, 0
 s_cbranch_scc1 L_Gh1
 s_mov_b64 exec, s[52:53]
 buffer_store_dwordx4 v[20:23], v56, s[4:7], s37 offen {LS}
 s_mov_b64 exec, s[54:55]
 buffer_store_dwordx2 v[20:21], v59, s[4:7], s37 offen offset:512 {LS}
 s_mov_b64 exec, -1
 buffer_load_dwordx4 v[48:51], v58, s[4:7], s62 offen sc1
 buffer_load_dwordx4 v[52:55], v58, s[4:7], s62 offen offset:128 sc1
 s_branch L_Gh
L_Gh1:
 s_mov_b64 exec, -1
 buffer_store_dwordx2 v[20:21], v56, s[4:7], s37 offen {LS}
 s_cmp_eq_u32 s14, 1
 s_cbranch_scc1 L_Gh
 buffer_load_dwordx4 v[48:51], v58, s[4:7], s62 offen sc1
 buffer_load_dwordx4 v[52:55], v58, s[4:7], s62 offen offset:256 sc1
 s_branch L_Gh
L_Gh2:
 s_mov_b32 exec_lo, -1
 s_mov_b32 exec_hi, {opt.get('tm',0x1fffff)}
 {'buffer_load_dword v48, v58, s[4:7], s18 offen sc1' if opt.get('touch',1) else ''}''')
    if opt.get('st'):
        A(f'''s_and_b32 s36, s15, 7
 s_cbranch_scc1 L_st1
 s_memtime s[96:97]
 s_memrealtime s[98:99]
 s_lshl_b32 s36, s23, 1
 s_add_u32 s36, s36, s15
 s_add_u32 s36, s36, {TS+0x300000}
 s_waitcnt lgkmcnt(0)
 v_mov_b32 v8, s96
 v_mov_b32 v9, s98
 s_mov_b64 exec, 1
 buffer_store_dwordx2 v[8:9], off, s[4:7], s36
L_st1:''')
    if full and opt.get('prog',True):
        A(f'''v_mov_b32 v8, s15
 s_mov_b64 exec, 1
 buffer_store_dword v8, off, s[4:7], s51 sc1''')
    A(f'''L_Gh:
 s_mov_b64 exec, -1
 buffer_store_dword v20, v2, s[4:7], s37 offen {LS}''')
    if opt.get('zearly'):
        for r in range(40,44): A(f'v_mov_b32 v{r}, 0')
    A(f'''s_setprio 3
 s_cmp_eq_u32 s15, 64
 s_barrier                       ; barrier T
 s_cbranch_scc0 L_Gloop''')
    if PW==1: pored(True)
    A('s_barrier')
    if PW<2: pored(True)
    A(f'''s_branch {XIT}
L_Gxr:
 s_mov_b64 exec, vcc
 s_branch L_Gx
L_G3:''')
    for w in range(4): A(f'ds_read_b128 v[{8+8*w}:{11+8*w}], v63 offset:{RGW*w}\n ds_read_b128 v[{12+8*w}:{15+8*w}], v63 offset:{RGW*w+16}')
    lgkm(4)
    for i in range(8): A(f'v_add_f32 v{8+i}, v{8+i}, v{16+i}')
    lgkm(0)
    for i in range(8): A(f'v_add_f32 v{24+i}, v{24+i}, v{32+i}')
    for i in range(4): A(f'v_add_f32 v{8+2*i}, v{8+2*i}, v{24+2*i}\n v_add_f32 v{9+2*i}, v{9+2*i}, v{25+2*i}\n v_cvt_pk_bf16_f32 v{40+i}, v{8+2*i}, v{9+2*i}')
    A(f'''v_mfma_f32_16x16x32_bf16 v[8:11], v[40:43], v[48:51], 0
 v_mfma_f32_16x16x32_bf16 v[12:15], v[40:43], v[52:55], 0
 v_cvt_pk_bf16_f32 v44, v8, v9
 v_cvt_pk_bf16_f32 v45, v10, v11
 s_mov_b64 exec, s[52:53]
 v_cvt_pk_bf16_f32 v44, v12, v13
 v_cvt_pk_bf16_f32 v45, v14, v15
 s_mov_b64 exec, -1
 v_min_u32 v44, s44, v44
 buffer_store_dwordx2 v[44:45], v56, s[4:7], s45 offen {LS}
 s_branch L_Gtail''')
    for r in range(4,0,-1):
        for k in range(4): blk(k, r, False)
    UB = lambda b: 64 + 8*b
    UM = lambda b: 36 + 4*b
    FD = lambda b: 96 + 4*b
    A(f'''
L_T:
 s_add_u32 s95, s95, 512
 s_load_dwordx2 s[8:9], s[0:1], 80
 s_mov_b32 s10, 0x800000
 s_mov_b32 s11, 0x20000
 s_mov_b32 s39, {f2u(SCALE_B)}
 s_lshl_b32 s36, s21, 12
 s_add_u32 s36, s36, s20
 s_add_u32 s36, s36, {SP}
 v_lshl_add_u32 v7, v57, 10, s36
 v_lshl_add_u32 v1, v56, 4, v7
 v_lshl_add_u32 v7, v56, 3, v7
 v_lshlrev_b32 v59, 4, v0
 s_lshl_b32 s36, s21, 11
 s_add_u32 s36, s36, s20
 s_add_u32 s36, s36, {VP}
 v_add_u32 v2, s36, v59
 s_lshl_b32 s23, s12, 2
 s_add_u32 s23, s23, s21         ; head
 v_lshlrev_b32 v5, 9, v57
 v_lshl_add_u32 v5, v56, 4, v5
 v_and_b32 v59, 1, v57
 v_mul_u32_u24 v4, 1280, v59
 v_lshl_add_u32 v4, v56, 4, v4
 v_lshrrev_b32 v59, 1, v57
 v_lshl_add_u32 v4, v59, 3, v4
 s_mul_i32 s36, s21, 2560
 s_add_u32 s36, s36, {RT}
 v_add_u32 v4, s36, v4
 v_mov_b32 v63, 0x4444
 v_and_b32 v59, 4, v0
 v_cmp_ne_u32 vcc, 0, v59
 v_cndmask_b32 v63, v63, v58, vcc
 s_lshl_b32 s36, s21, 2
 s_add_u32 s37, s36, {LFLAG}
 v_mov_b32 v58, s37
 v_and_b32 v59, 7, v0
 s_add_u32 s37, s36, {RINV}
 v_lshl_add_u32 v6, v59, 4, s37
 s_lshl_b32 s24, s12, 4
 s_add_u32 s24, s24, s13
 s_lshl_b32 s36, s24, 7
 s_lshl_b32 s37, s21, 4
 s_add_u32 s36, s36, s37
 s_add_u32 s36, s36, {H3}
 v_lshlrev_b32 v53, 2, v0
 v_add_u32 v53, s36, v53
 v_mov_b32 v55, 0
 v_mov_b32 v8, 0
 v_mov_b32 v9, 0
 v_mov_b32 v10, 0
 v_mov_b32 v11, 0
 ds_write_b32 v58, v8
 ds_write_b32 v58, v8 offset:16
 ; selection matrices a96..a107, mask v28..31
 v_mov_b32 v16, s40
 v_mov_b32 v17, s41''')
    for m in range(3):
        for r in range(4):
            e = 2*r
            row = [e, 8+e, 8+4*r][m]
            if m == 2 and r >= 2: A(f'v_accvgpr_write_b32 a{96+4*m+r}, 0'); continue
            A(f'v_cmp_eq_u32 vcc, {row}, v56\n v_cndmask_b32 v12, 0, v16, vcc\n v_cmp_eq_u32 vcc, {row+1}, v56\n v_cndmask_b32 v12, v12, v17, vcc\n v_accvgpr_write_b32 a{96+4*m+r}, v12')
    A('v_mov_b32 v12, 0xf149f2ca\n v_cmp_gt_u32 vcc, 32, v0')
    for r in range(4): A(f'v_cndmask_b32 v{28+r}, 0, v12, vcc')
    A('v_mov_b32 v122, 0\n v_mov_b32 v123, 0')
    if full:
        A(f'''s_lshl_b32 s36, s24, 8
 s_lshl_b32 s37, s21, 6
 s_add_u32 s36, s36, s37
 s_add_u32 s36, s36, {FL}
 v_lshlrev_b32 v12, 4, v0
 s_mov_b64 exec, 15
 buffer_store_dwordx4 v[8:11], v12, s[4:7], s36 offen sc1
 s_lshl_b32 s36, s24, 7
 s_add_u32 s36, s36, {FC}
 buffer_store_dwordx4 v[8:11], v12, s[4:7], s36 offen sc1
 s_mov_b64 exec, -1
 v_lshlrev_b32 v52, 2, v0
 s_lshl_b32 s36, s12, 11
 s_add_u32 s36, s36, {FL}
 v_add_u32 v52, s36, v52''')
    A(f'''
 v_lshlrev_b32 v10, 14, v57
 v_lshl_add_u32 v10, v56, 3, v10
 s_lshl_b32 s36, s13, 7
 v_add_u32 v10, s36, v10
 s_lshl_b32 s36, s21, 11
 s_add_u32 s36, s36, s20
 s_add_u32 s36, s36, {SQ}
 v_lshl_add_u32 v59, v57, 9, s36
 v_lshl_add_u32 v59, v56, 5, v59
 v_mul_u32_u24 v62, 272, v56
 v_lshl_add_u32 v62, v57, 6, v62
 s_mul_i32 s36, s21, 8704
 s_add_u32 s36, s36, {POL}
 v_add_u32 v62, s36, v62
 v_lshrrev_b32 v12, 3, v0
 v_mul_u32_u24 v13, 272, v12
 v_and_b32 v12, 7, v0
 v_lshl_add_u32 v13, v12, 5, v13
 s_mul_i32 s36, s21, {8*272}
 s_add_u32 s36, s36, {POL}
 v_add_u32 v13, s36, v13
 v_accvgpr_write_b32 a116, v13
 s_lshl_b32 s58, s24, 12
 s_lshl_b32 s36, s21, 10
 s_add_u32 s58, s58, s36
 s_add_u32 s58, s58, {PO-0x100000}
 s_lshl_b32 s36, s23, 13
 s_add_u32 s36, s36, {EX}
 v_and_b32 v57, 31, v0
 v_lshl_add_u32 v57, v57, 3, s36
 v_lshl_add_u32 v56, v0, 4, s36
 s_waitcnt vmcnt(0) lgkmcnt(0)
 s_barrier
 s_cmp_lg_u32 s14, 4
 s_cbranch_scc1 L_Tw
 s_mov_b64 exec, 1
 v_mov_b32 v8, 128
 v_mov_b32 v9, 1
 global_atomic_add v8, v9, s[16:17] sc1
 s_mov_b64 exec, -1
L_Tw:
 s_lshl_b32 s36, s23, 18
''')
    for kap in range(4):
        for e in range(8):
            r = 64 + (kap*8+e)*2
            A(f's_add_u32 s37, s36, {(32*kap+e)*2048}\n buffer_load_dwordx2 v[{r}:{r+1}], v10, s[8:11], s37 offen {opt.get("wnt","nt")}')
    A('s_waitcnt vmcnt(0)')
    wo = lambda b, kap: 16*b + 4*kap
    for kap in range(4):
        for p in range(4):
            ra = 64 + (kap*8+2*p)*2; rb = ra + 2
            for b in range(4):
                A(f'v_perm_b32 v12, v{rb+b//2}, v{ra+b//2}, s{42+(b&1)}\n v_accvgpr_write_b32 a{wo(b,kap)+p}, v12')
    tlog(A,'2100',4,opt.get('tl'))
    A(f'''s_barrier
 s_cmp_lg_u32 s14, 4
 s_cbranch_scc1 L_Ti2
 s_mov_b64 exec, 1
 s_lshl_b32 s36, s24, 7
 s_and_b32 s37, s36, 0x2000
 s_add_u32 s36, s36, s37
 s_add_u32 s36, s36, {XP+0x100000}
 s_add_u32 s37, s36, 0x2000
 buffer_store_dword v9, off, s[4:7], s37 sc1
 s_waitcnt vmcnt(0)
 s_memtime s[26:27]
 s_waitcnt lgkmcnt(0)
 buffer_store_dword v9, off, s[4:7], s36 sc1
 s_waitcnt vmcnt(0)
 s_memtime s[28:29]
 s_waitcnt lgkmcnt(0)
 buffer_store_dword v9, off, s[4:7], s37 sc1
 s_waitcnt vmcnt(0)
 s_memtime s[30:31]
 s_waitcnt lgkmcnt(0)
 s_sub_u32 s26, s28, s26
 s_sub_u32 s28, s30, s28
 s_cmp_gt_u32 s26, s28
 s_cselect_b32 s26, 0x101, 1
 v_mov_b32 v8, 132
 v_mov_b32 v9, s26
 global_atomic_add v8, v9, s[16:17] sc1''')
    tlog(A,'2104',4,opt.get('tl'))
    A(f'''s_mov_b64 exec, 1
 v_mov_b32 v8, 128
L_Ti:
 s_sleep {opt.get('isl',8)}
 global_load_dwordx2 v[10:11], v8, s[16:17] sc1''')
    G('i')
    A(f'''s_waitcnt vmcnt(0)
 v_and_b32 v9, 0xff, v11
 v_min_u32 v9, v9, v10
 v_cmp_ne_u32 vcc, 128, v9
 s_cbranch_vccnz L_Ti
 v_mov_b32 v9, 0x2000
 v_cmp_lt_u32 vcc, 0x4100, v11
 v_cndmask_b32 v9, 0, v9, vcc
 {f"v_mov_b32 v9, {opt['sel']<<13}" if 'sel' in opt else ''}
 ds_write_b32 v58, v9 offset:32
 s_mov_b64 exec, -1''')
    def kvpoll(t, mask, so):
        A(f's_mov_b64 exec, {mask}\nL_kv{t}:\n buffer_load_dword v9, v52, s[4:7], {so} offen sc1')
        G('i')
        A(f's_waitcnt vmcnt(0)\n v_cmp_gt_u32 vcc, 8, v9\n s_cbranch_vccnz L_kv{t}\n s_mov_b64 exec, -1')
    def eload(so):
        A(f'buffer_load_dwordx4 a[108:111], v56, s[4:7], {so} offen sc1\n buffer_load_dwordx4 a[112:115], v56, s[4:7], {so} offen offset:1024 sc1\n buffer_load_dwordx2 v[60:61], v57, s[4:7], {so} offen offset:2048 sc1')
    tlog(A,'2101',4,opt.get('tl'))
    if full: kvpoll('0', '3', '0')
    tlog(A,'2102',4,opt.get('tl'))
    A(f'''s_waitcnt lgkmcnt(0)
L_Ti2:
 s_barrier
 s_lshl_b32 s36, s23, 13
 s_add_u32 s36, s36, {VF}
 v_add_u32 v5, s36, v5
 s_mov_b32 s49, 0
 s_mov_b32 s50, 4096''')
    def vload(lo, hi):
        for q in range(lo, hi):
            A(f'buffer_load_dwordx4 a[{64+4*q}:{67+4*q}], v5, s[4:7], {"s49" if (q&3)<2 else "s50"} offen offset:{2048*(q&1)+256*(q>>2)} sc1')
    VW = opt.get('vw', 4); VP2 = opt.get('vp2', 1); EW = opt.get('ew', 0)
    vload(0, 8)
    A('s_waitcnt vmcnt(0)')
    tlog(A,'2103',4,opt.get('tl'))
    A('L_Tux:')
    for H in range(2):
        for kap in range(4):
            q = H*4+kap
            if q >= VW: A(f's_waitcnt vmcnt({7-q+(3 if EW==0 and VP2<3 else 0)})')
            for b in range(4):
                d = 96 + (H*4+b)*4
                c = '0' if kap == 0 else f'v[{d}:{d+3}]'
                A(f'v_mfma_f32_16x16x32_bf16 v[{d}:{d+3}], a[{64+4*q}:{67+4*q}], a[{wo(b,kap)}:{wo(b,kap)+3}], {c}')
    for r in range(36,52): A(f'v_mov_b32 v{r}, 0')
    for H in range(2):
        for b in range(4):
            d = 96 + (H*4+b)*4
            A(f'v_cvt_pk_bf16_f32 v{UB(b)+4*H}, v{d}, v{d+1}\n v_cvt_pk_bf16_f32 v{UB(b)+4*H+1}, v{d+2}, v{d+3}')
            if H: A(f'v_mov_b32 v{UB(b)+2}, v{UB(b)+4}\n v_mov_b32 v{UB(b)+3}, v{UB(b)+5}')
    def tred():
        A('v_accvgpr_read_b32 v16, a116\n v_lshlrev_b32 v17, 4, v0')
        for h in range(4): A(f'ds_read_b128 v[{96+8*h}:{99+8*h}], v16 offset:{8704*h}\n ds_read_b128 v[{100+8*h}:{103+8*h}], v16 offset:{8704*h+16}')
        A('v_xor_b32 v16, 0x10000, v16\n v_accvgpr_write_b32 a116, v16')
        lgkm(4)
        for i in range(8): A(f'v_add_f32 v{96+i}, v{96+i}, v{104+i}')
        lgkm(0)
        for i in range(8): A(f'v_add_f32 v{112+i}, v{112+i}, v{120+i}')
        for i in range(8): A(f'v_add_f32 v{96+i}, v{96+i}, v{112+i}')
        for i in range(4): A(f'v_cvt_pk_bf16_f32 v{20+i}, v{96+2*i}, v{97+2*i}')
        A('buffer_store_dwordx4 v[20:23], v17, s[4:7], s58 offen sc1 PONT\n s_add_u32 s58, s58, 0x80000')
    if PW==2: tred()
    for r in list(range(96,112))+[122,123]: A(f'v_mov_b32 v{r}, 0')
    A(f'''s_and_b32 s45, s15, 3
 s_lshl_b32 s45, s45, 17
 s_add_u32 s38, s15, 1           ; tag
 s_min_u32 s49, s38, 63
 s_lshl_b32 s49, s49, 18
 s_add_u32 s50, s49, 4096
 s_lshl_b32 s46, s15, 18
 v_mov_b32 v54, s38''')
    if EW==2: eload('s46')
    if full:
        A(f'''s_add_u32 s48, s15, 2
 s_and_b32 s47, s48, 0x43
 s_cbranch_scc1 L_Tf
 s_cmp_lg_u32 s14, 4
 s_cbranch_scc1 L_Tf
 s_lshl_b32 s47, s48, 5''')
        kvpoll('1', '7', 's47')
    A(f'''L_Tf:
 s_setprio 1
 s_barrier                       ; barrier G''')
    vload(0, VW)
    if EW==1: eload('s46')
    A('s_mov_b64 exec, 0xf')
    stamp(0)
    if opt.get('tl'):
        A('s_cmp_gt_u32 s15, 3\n s_cbranch_scc1 L_tly\n s_add_u32 s94, s15, 2200')
        tlog(A,'s94',4,True)
        A('s_mov_b64 exec, 0xf\nL_tly:')
    A('L_Th:\n buffer_load_dword v55, v53, s[4:7], 0 offen sc1')
    G('h')
    A(f's_waitcnt vmcnt({opt.get("h3d",2)})\n v_cmp_ne_u32 vcc, s38, v55\n s_cbranch_vccnz L_Th\n s_mov_b64 exec, -1')
    for k in range(opt.get('hdl',0)): A('ds_read_b32 v14, v6\n s_waitcnt lgkmcnt(0)')
    def s_issue():
        A('buffer_load_dwordx4 v[112:115], v1, s[4:7], s45 offen sc1\n buffer_load_dwordx4 v[116:119], v1, s[4:7], s45 offen offset:256 sc1\n buffer_load_dwordx2 v[120:121], v7, s[4:7], s45 offen offset:512 sc1')
    def v_issue():
        for k in range(2): A(f'buffer_load_dwordx4 v[{20+4*k}:{23+4*k}], v2, s[4:7], s45 offen offset:{1024*k} sc1')
    s_issue()
    if not opt.get('vlate'): v_issue()
    stamp(1)
    if opt.get('vlate'): v_issue()
    SM = ['v_mfma_f32_16x16x32_bf16 v[8:11], a[96:99], v[112:115], 0', 'v_mfma_f32_16x16x32_bf16 v[8:11], a[100:103], v[116:119], v[8:11]', 'v_mfma_f32_16x16x32_bf16 v[12:15], a[104:107], v[120:123], v[28:31]']
    um = [f'v_smfmac_f32_16x16x64_bf16 v[{UM(b)}:{UM(b)+3}], v[{20+4*k}:{23+4*k}], a[{16*b+8*k}:{16*b+8*k+7}], v63' for k in range(2) for b in range(4)]
    uc = [x for b in range(4) for x in (f'v_cvt_pk_bf16_f32 v{UB(b)+6}, v{UM(b)}, v{UM(b)+1}', f'v_cvt_pk_bf16_f32 v{UB(b)+7}, v{UM(b)+2}, v{UM(b)+3}')]
    SML='buffer_load_dwordx4 v[112:115], v59, s[4:7], s45 offen sc1\n buffer_load_dwordx4 v[116:119], v59, s[4:7], s45 offen offset:16 sc1'
    A(f'''s_waitcnt vmcnt(4)
 {SM[0]}
 s_waitcnt vmcnt(3)
 {SM[1]}
 s_waitcnt vmcnt(2)
L_Ts:
 {SM[2]}
 v_max3_u32 v16, v112, v116, v120
 v_cmp_eq_u32 vcc, -1, v16
 s_cbranch_vccnz L_Tsr''')
    stamp(2)
    A(f'''s_waitcnt vmcnt(1)
 {um[0]}
 {um[1]}
 v_max3_f32 v16, v8, v9, v10
 v_max3_f32 v16, v16, v11, v12
 v_max_f32 v16, v16, v13
 {um[2]}
 v_max_f32_dpp v17, v16, v16 row_ror:8 row_mask:0xf bank_mask:0xf
 v_max_f32_dpp v16, v16, v16 row_ror:8 row_mask:0xf bank_mask:0xf
 {um[3]}
 s_waitcnt vmcnt(0)
 v_permlane16_swap_b32 v16, v17
 v_max_f32 v18, v16, v17
 v_max_f32 v16, v16, v17
 {um[4]}
 v_max_u32 v19, v20, v24
 v_permlane32_swap_b32 v16, v18
 v_max_f32 v16, v16, v18
 v_mul_f32 v16, s39, v16
 {um[5]}
 v_cmp_eq_u32 vcc, -1, v19
 ds_write_b32 v58, v54
 {SML if opt.get('sml',0)==0 else ''}
 v_fma_f32 v8, v8, s39, -v16
 v_fma_f32 v9, v9, s39, -v16
 {um[6]}
 v_exp_f32 v8, v8
 v_fma_f32 v10, v10, s39, -v16
 {um[7]}
 v_exp_f32 v9, v9
 v_fma_f32 v11, v11, s39, -v16
 v_exp_f32 v10, v10
 v_fma_f32 v12, v12, s39, -v16
 v_exp_f32 v11, v11
 v_fma_f32 v13, v13, s39, -v16
 v_exp_f32 v12, v12
 v_cvt_pk_bf16_f32 v32, v8, v9
 v_exp_f32 v13, v13
 v_cvt_pk_bf16_f32 v34, v10, v11
 s_cbranch_vccnz L_Tvr
L_Tv:
 {uc[0]}
 {uc[1]}
 v_cvt_pk_bf16_f32 v33, v12, v13
 v_cvt_pk_bf16_f32 v35, v12, v13''')
    stamp(3)
    pv = lambda b: f'v_smfmac_f32_16x16x64_bf16 v[{FD(b)}:{FD(b)+3}], v[32:35], v[{UB(b)}:{UB(b)+7}], v3'
    A(f'''{uc[4]}
 {uc[5]}
 {pv(0)}
 {uc[2]}
 {uc[3]}
 {pv(2)}
 {uc[6]}
 {uc[7]}
 {pv(1)}
 v_add_f32 v16, v8, v9
 v_add_f32 v17, v10, v11
 {pv(3)}
 v_add_f32 v16, v16, v17
 v_add_f32 v17, v12, v13
 v_add_f32 v16, v16, v17''')
    sw = lambda a,b: [f'v_permlane32_swap_b32 v{FD(a)+i}, v{FD(b)+i}' for i in range(4)]
    s0, s1 = sw(0,2), sw(1,3)
    a0 = [f'v_add_f32 v{8+2*i}, v{FD(0)+i}, v{FD(2)+i}' for i in range(4)]
    a1 = [f'v_add_f32 v{9+2*i}, v{FD(1)+i}, v{FD(3)+i}' for i in range(4)]
    A('\n'.join([s0[0], s0[1],
      'v_add_f32_dpp v17, v16, v16 row_ror:8 row_mask:0xf bank_mask:0xf', 'v_add_f32_dpp v16, v16, v16 row_ror:8 row_mask:0xf bank_mask:0xf',
      s0[2], s0[3], 'v_permlane16_swap_b32 v16, v17', 'v_add_f32 v18, v16, v17', 'v_add_f32 v16, v16, v17', s1[0], s1[1],
      'v_permlane32_swap_b32 v16, v18', a0[0], a1[0], a0[1], a1[1], 'ds_write2_b64 v4, v[8:9], v[10:11] offset0:0 offset1:40', 'v_add_f32 v16, v16, v18', s1[2], s1[3], 'v_rcp_f32 v16, v16',
      a0[2], a1[2], a0[3], a1[3], 'ds_write2_b64 v4, v[12:13], v[14:15] offset0:80 offset1:120', 'ds_write_b32 v6, v16']))
    stamp(4)
    if opt.get('sml',0)==1: A(SML)
    A('''s_waitcnt lgkmcnt(0)
 s_barrier                       ; barrier T
 s_setprio 0''')
    if opt.get('tl'):
        A('s_cmp_gt_u32 s15, 3\n s_cbranch_scc1 L_tlz\n s_add_u32 s94, s15, 2300')
        tlog(A,'s94',4,True)
        A('L_tlz:')
    flush_ts(5, 12, 't')
    A('s_cmp_eq_u32 s15, 0\n s_cbranch_scc1 L_Te0\nL_Te:\n s_waitcnt vmcnt(0)\n v_max_u32 v16, v112, v116\n v_cmp_eq_u32 vcc, -1, v16\n s_cbranch_vccnz L_Ter')
    AX = [96, 36]
    mx = [f'v_mfma_f32_16x16x32_bf16 v[{AX[qb]+4*b}:{AX[qb]+4*b+3}], v[{UB(b)}:{UB(b)+3}], a[{108+4*qb}:{111+4*qb}], 0' for qb in range(2) for b in range(4)]
    mm = lambda qb: [f'v_mfma_f32_16x16x16_bf16 v[{112+4*b}:{115+4*b}], v[{UB(b)+6}:{UB(b)+7}], v[{12+2*qb}:{13+2*qb}], 0' for b in range(4)]
    if VP2==0: vload(VW, 8)
    A(f'''{SM[0]}
 {SM[1]}
 {mx[0]}
 {mx[1]}
 v_max3_f32 v16, v8, v9, v10
 v_max_f32 v16, v16, v11
 v_mov_b32 v17, v16
 {mx[2]}
 v_permlane32_swap_b32 v16, v17
 v_max_f32 v16, v16, v17
 v_mul_f32 v16, s39, v16
 v_max_f32 v16, v16, v60
 {mx[3]}
 v_fma_f32 v8, v8, s39, -v16
 v_fma_f32 v9, v9, s39, -v16
 v_fma_f32 v10, v10, s39, -v16
 v_fma_f32 v11, v11, s39, -v16
 v_sub_f32 v18, v60, v16''')
    if VP2==1: vload(VW, 8)
    A(f'''{mx[4]}
 v_exp_f32 v8, v8
 v_exp_f32 v9, v9
 {mx[5]}
 v_exp_f32 v10, v10
 v_exp_f32 v11, v11
 {mx[6]}
 v_exp_f32 v18, v18
 v_add_f32 v16, v8, v9
 v_add_f32 v17, v10, v11
 {mx[7]}
 v_add_f32 v16, v16, v17
 v_mov_b32 v17, v16
 v_permlane32_swap_b32 v16, v17
 v_add_f32 v16, v16, v17
 v_fmac_f32 v16, v18, v61
 v_rcp_f32 v16, v16
 s_add_u32 s15, s15, 1''')
    if VP2==2: vload(VW, 8)
    if EW==0: eload('s49')
    A(f'''v_mul_f32 v8, v8, v16
 v_mul_f32 v9, v9, v16
 v_mul_f32 v10, v10, v16
 v_mul_f32 v11, v11, v16
 v_mul_f32 v18, v18, v16
 v_cvt_pk_bf16_f32 v12, v8, v9
 v_cvt_pk_bf16_f32 v13, v10, v11
 v_cvt_pk_bf16_f32 v14, v8, v9
 v_cvt_pk_bf16_f32 v15, v10, v11
 v_mov_b32 v19, v18
 v_permlane16_swap_b32 v12, v14
 v_permlane16_swap_b32 v13, v15
 v_permlane16_swap_b32 v18, v19''')
    DQ = [[8,20,24,32],[96,100,104,108]]
    for qb in range(2):
        A('\n'.join(mm(qb)))
        for b in range(4):
            for i in range(4): A(f'v_fma_f32 v{DQ[qb][i]+b}, v{AX[qb]+4*b+i}, v{18+qb}, v{112+4*b+i}')
        for i in range(4): A(f'ds_write_b128 v62, v[{DQ[qb][i]}:{DQ[qb][i]+3}] offset:{4352*qb+16*i}')
        if VP2==3+qb: vload(VW, 8)
    A('v_xor_b32 v62, 0x10000, v62')
    A(f'''s_cmp_lg_u32 s15, 64
 s_waitcnt lgkmcnt(0)
 s_cbranch_scc1 L_Tux''')
    if PW==2: tred()
    A('s_barrier')
    if PW==2: tred()
    A(f'''s_branch {XIT}
L_Te0:''')
    if full: kvpoll('2', '4', '0')
    eload('0')
    A(f's_branch L_Te\nL_Ter:\n {SML}')
    G('e')
    A(f'''s_branch L_Te
L_Tsr:
 s_mov_b64 exec, vcc''')
    s_issue(); A('s_mov_b64 exec, -1'); v_issue(); G('s')
    A(f's_waitcnt vmcnt(2)\n {SM[0]}\n {SM[1]}\n s_branch L_Ts\nL_Tvr:\n s_mov_b64 exec, vcc')
    v_issue(); A('s_mov_b64 exec, -1'); G('v')
    for r in range(36,52): A(f'v_mov_b32 v{r}, 0')
    A('s_waitcnt vmcnt(0)\n v_max_u32 v19, v20, v24\n v_cmp_eq_u32 vcc, -1, v19\n s_cbranch_vccnz L_Tvr')
    A('\n'.join(um))
    A('s_branch L_Tv')

SPLIT='''s_lshr_b32 s10, s12, 2
 s_and_b32 s12, s12, 3
 s_lshl_b32 s12, s12, 1
 s_lshr_b32 s11, s13, 4
 s_add_u32 s12, s12, s11
 s_and_b32 s13, s13, 15
 s_lshl_b32 s10, s10, 4
 s_add_u32 s13, s13, s10'''
def gen_test(opt):
    A = Asm()
    A(f'''
 s_load_dwordx2 s[4:5], s[0:1], 120
 s_load_dwordx2 s[16:17], s[0:1], 112
 s_getreg_b32 s12, hwreg(HW_REG_XCC_ID, 0, 4)
 s_mov_b32 s6, 0x10000000
 s_mov_b32 s7, 0x20000
 v_lshrrev_b32 v3, 6, v0
 v_readfirstlane_b32 s14, v3
 v_and_b32 v0, 63, v0
 s_and_b32 s12, s12, 7
 s_waitcnt lgkmcnt(0)
 v_mov_b32 v11, 30000
 s_cmp_lg_u32 s14, 0
 s_cbranch_scc1 L_r1
 s_lshl_b32 s10, s12, 2
 v_mov_b32 v8, s10
 v_mov_b32 v9, 1
 s_mov_b64 exec, 1
 global_atomic_add v10, v8, v9, s[16:17] sc0 sc1
 s_waitcnt vmcnt(0)
 ds_write_b32 v11, v10
 s_mov_b64 exec, -1
 s_waitcnt lgkmcnt(0)
L_r1:
 s_barrier
 ds_read_b32 v10, v11
 s_waitcnt lgkmcnt(0)
 v_readfirstlane_b32 s13, v10
 s_cmp_ge_u32 s13, 32
 s_cbranch_scc1 L_end
 {SPLIT}
 s_cmp_ge_u32 s13, 16
 s_cbranch_scc1 L_end
''')
    gen_chain(A, opt)
    A('L_end:')
    n = A.pad_fast(opt.get('mt', True))
    return A.text()
if __name__ == '__main__':
    print(gen_test({}))
```

```python
import sys
from asmlib import *
import chain3 as C
from bulk import *
NAME='gated_mix__grouped_kv_mqa__memory_aug_recurrent_mem_tr__prompt'
def gen(opt):
    A=Asm()
    TL[0]=opt.get('tl',False)
    SLP[0]=opt.get('slp',4)
    guard=opt.get('guard',True)
    GUARD[0]='s_add_u32 s61, s61, 1\n s_cmp_gt_u32 s61, 100000\n s_cbranch_scc1 LBL' if guard else ''
    G2='s_add_u32 s62, s62, 1\n s_cmp_gt_u32 s62, 400\n s_cbranch_scc1 L_end' if guard else ''
    SPLIT='''s_lshr_b32 s10, s12, 2
 s_and_b32 s12, s12, 3
 s_lshl_b32 s12, s12, 1
 s_lshr_b32 s11, s13, 4
 s_add_u32 s12, s12, s11
 s_and_b32 s13, s13, 15
 s_xor_b32 s10, s10, %d
 s_lshl_b32 s10, s10, 4
 s_add_u32 s13, s13, s10'''%(opt.get('split',1)-1)
    A(f'''
 s_load_dwordx2 s[4:5], s[0:1], 120
 s_load_dwordx2 s[16:17], s[0:1], 112
 s_getreg_b32 s12, hwreg(HW_REG_XCC_ID, 0, 4)
 s_mov_b32 s6, 0x10000000
 s_mov_b32 s7, 0x20000
 v_lshrrev_b32 v3, 6, v0
 v_readfirstlane_b32 s14, v3
 v_and_b32 v0, 63, v0
 s_and_b32 s12, s12, 7
 s_mov_b32 s63, 0
 s_mov_b32 s61, 0
 s_mov_b32 s62, 0
 v_mov_b32 v11, {LCTL}
 s_waitcnt lgkmcnt(0)
 s_cmp_lg_u32 s14, 0
 s_cbranch_scc1 L_r1
 s_lshl_b32 s10, s12, 2
 v_mov_b32 v8, s10
 v_mov_b32 v9, 1
 s_mov_b64 exec, 1
 global_atomic_add v10, v8, v9, s[16:17] sc0 sc1
 s_waitcnt vmcnt(0)
 ds_write_b32 v11, v10
 s_mov_b64 exec, -1
 s_waitcnt lgkmcnt(0)
L_r1:
 s_barrier
 ds_read_b32 v10, v11
 s_waitcnt lgkmcnt(0)
 v_readfirstlane_b32 s13, v10
 s_cmp_ge_u32 s13, 32
 s_cbranch_scc1 L_end
 {SPLIT}
 s_lshl_b32 s95, s12, 5
 s_add_u32 s95, s95, s13
 s_lshl_b32 s95, s95, 10
 s_add_u32 s95, s95, {C.TS+0x100000}
 s_sub_u32 s40, s13, 16
 s_cbranch_scc0 L_disp
''')
    tlog(A,'2000',0,TL[0])
    o=dict(hp=1,h3d=8,vp2=3); o.update(opt); o['full']=True
    C.gen_chain(A,o)
    A(f'''L_cend:
 s_waitcnt vmcnt(0)
 s_barrier
 s_cmp_lg_u32 s14, 2
 s_cbranch_scc1 L_end
 v_mov_b32 v8, 100
 s_mov_b64 exec, 1
 buffer_store_dword v8, off, s[4:7], s51 sc1''')
    if TL[0]: A('s_add_u32 s95, s95, 496')
    tlog(A,'3999',2,TL[0])
    A(f'''s_branch L_end
L_next:
 {G2}
 s_waitcnt vmcnt(0)
 s_barrier
 v_mov_b32 v11, {LCTL}
 s_cmp_lg_u32 s14, 0
 s_cbranch_scc1 L_n2
 s_mov_b64 exec, 1
 s_lshl_b32 s10, s12, 2
 s_add_u32 s10, s10, 32
 v_mov_b32 v8, s10
 v_mov_b32 v9, 1
 global_atomic_add v10, v8, v9, s[16:17] sc0 sc1
 s_cmp_lg_u32 s63, 0
 s_cbranch_scc1 L_n0
 v_mov_b32 v8, 128
L_ni:
 s_sleep 8
 global_load_dword v9, v8, s[16:17] sc1
 s_waitcnt vmcnt(0)
 {GUARD[0].replace('LBL','L_n0')}
 v_cmp_ne_u32 vcc, 128, v9
 s_cbranch_vccnz L_ni
L_n0:
 s_cmp_eq_u32 s37, 0
 s_cbranch_scc1 L_n1
 s_mov_b32 exec_lo, s37
 v_lshlrev_b32 v8, 7, v0
 v_mov_b32 v9, s39
 buffer_atomic_add v9, v8, s[4:7], s36 offen sc1
 s_mov_b64 exec, 1
 s_waitcnt vmcnt(1)
 s_branch L_n3
L_n1:
 s_waitcnt vmcnt(0)
L_n3:
 ds_write_b32 v11, v10
 s_mov_b64 exec, -1
 s_waitcnt lgkmcnt(0)
L_n2:
 s_mov_b32 s63, 1
 s_barrier
 ds_read_b32 v10, v11
 s_waitcnt lgkmcnt(0)
 v_readfirstlane_b32 s40, v10
 s_add_u32 s40, s40, 16
L_disp:
 s_mov_b32 s37, 1
 s_mov_b32 s39, 1''')
    tlog(A,'s40',0,TL[0])
    if opt.get('maxt'): A(f's_cmp_ge_u32 s40, {opt["maxt"]}\n s_cbranch_scc1 L_end')
    srd(A,8,0,0x400000)
    def tile(rb, j0, big):
        lg = 1 if big else 2
        return f'''s_add_u32 s40, s40, {j0}
 s_lshr_b32 s41, s40, {lg}
 s_and_b32 s34, s40, {(1<<lg)-1}
 s_lshl_b32 s35, s12, {lg}
 s_add_u32 s34, s34, s35
 s_lshl_b32 s25, s34, {10-lg}
 s_lshl_b32 s27, s34, {15-lg}
 s_mov_b32 s33, {rb}
 s_mov_b32 s42, {2 if big else 1}
 s_branch L_bw'''
    t_sx=lambda p0: f's_add_u32 s24, s40, {p0}\n s_branch L_sx'
    t_aq=lambda j0: f'''s_add_u32 s40, s40, {j0}
 s_load_dwordx2 s[20:21], s[0:1], 8
 s_mov_b32 s22, 0x200000
 s_mov_b32 s23, 0x20000
 s_lshl_b32 s24, s12, 19
 s_lshl_b32 s25, s40, 9
 s_lshl_b32 s27, s40, 14
 s_add_u32 s27, s27, s24
 s_add_u32 s27, s27, {QA}
 s_mov_b32 s28, 65536
 s_mov_b32 s32, 2048
 s_lshl_b32 s36, s12, 7
 s_lshr_b32 s34, s40, 1
 s_lshl_b32 s34, s34, 2
 s_add_u32 s36, s36, s34
 s_add_u32 s36, s36, {FAQ}
 s_branch L_gemmb'''
    t_at=lambda j0: f'''s_add_u32 s40, s40, {j0}
 s_lshr_b32 s24, s40, 1
 s_lshl_b32 s33, s12, 3
 s_add_u32 s24, s24, s33
 s_and_b32 s25, s40, 1
 s_branch L_attA'''
    t_op='''s_lshr_b32 s33, s40, 1
 s_and_b32 s34, s40, 1
 s_lshl_b32 s24, s33, 2
 s_lshl_b32 s25, s12, 1
 s_add_u32 s25, s25, s34
 s_lshl_b32 s25, s25, 7
 s_branch L_op4'''
    T=[(12,tile(0,0,0)),(4,t_sx(0)),(12,tile(1,0,0)),(4,tile(2,0,0)),(4,t_sx(4)),(8,tile(2,4,0)),(6,tile(3,0,1)),(1,'s_branch L_akv'),(1,tile(4,0,1)),
       (4,t_sx(8)),(5,tile(4,1,1)),(3,t_aq(0)),(4,t_sx(12)),(1,t_aq(3)),(6,tile(5,0,1)),(5,tile(6,0,1)),(4,t_sx(16)),(1,tile(6,5,1)),(6,tile(7,0,1)),
       (4,t_sx(20)),(4,t_at(0)),(4,t_sx(24)),(6,t_at(4)),(4,t_sx(28)),(6,t_at(10)),(32,t_op)]
    for i,(n,code) in enumerate(T):
        A(f's_cmp_ge_u32 s40, {n}\n s_cbranch_scc1 L_d{i}\n {code}\nL_d{i}:\n s_sub_u32 s40, s40, {n}')
    A(f'''s_branch L_end
L_bw:
 ; s41: 0 K, 1 Q, 2 V
 s_lshl_b32 s24, s33, 19
 s_lshl_b32 s34, s33, 21
 s_add_u32 s27, s27, s34
 s_lshl_b32 s36, s12, 3
 s_add_u32 s36, s36, s33
 s_lshl_b32 s36, s36, 8
 s_add_u32 s36, s36, {FKV}
 s_mov_b32 s37, 3
 s_lshr_b32 s34, s41, 1
 s_lshl_b32 s39, s42, s34
 s_lshl_b32 s34, s34, 2
 s_add_u32 s36, s36, s34
 s_lshl_b32 s33, s41, 3
 s_lshr_b32 s34, 0x483840, s33
 s_and_b32 s34, s34, 0xff
 s_load_dwordx2 s[20:21], s[0:1], s34
 s_mov_b32 s22, 0x800000
 s_mov_b32 s23, 0x20000
 s_lshr_b32 s34, 0x020301, s33
 s_lshl_b32 s34, s34, 24
 s_add_u32 s27, s27, s34
 s_mov_b32 s28, 0x40000
 s_mov_b32 s32, 8192
 s_cmp_eq_u32 s42, 1
 s_cbranch_scc1 L_gemmm
''')
    gemm(A,'b',4,2,2,4,2)
    gemm(A,'m',2,2,4,2,3)
    akv(A); attnA(A); sx(A); oproj(A,'4',4)
    A('L_end:')
    A.pad_fast(opt.get('mt',True))
    return A.text()
def full_text(opt):
    ref=open(f'cdna_kernels/{NAME}.s.ref').read()
    head,rest=ref.split(f'{NAME}_kernel:\n',1)
    tail=rest[rest.index('s_endpgm'):]
    head=head.replace('; @launch grid=(8192,1,1) block=(256,1,1) lds=0',f'; @launch grid=(256,1,1) block=(512,1,1) lds={LDSZ}')
    tail=tail.replace('accum_offset 256','accum_offset 128')
    return head+f'{NAME}_kernel:\n'+gen(opt)+tail
if __name__=='__main__':
    opt=eval(sys.argv[1]) if len(sys.argv)>1 else {}
    out=sys.argv[2] if len(sys.argv)>2 else f'cdna_kernels/{NAME}.s'
    open(out,'w').write(full_text(opt))
```
